```python
import torch

def _softmax(x, axis=-1):
    return torch.softmax(x, dim=axis)
def _gelu(x):
    return torch.nn.functional.gelu(x, approximate="tanh")
def _silu(x):
    return torch.nn.functional.silu(x)
def _sigmoid(x):
    return torch.sigmoid(x)
def _layernorm(x, axis=-1, eps=1e-5):
    m = x.mean(dim=axis, keepdim=True)
    v = x.var(dim=axis, keepdim=True, unbiased=False)
    return (x - m) / torch.sqrt(v + eps)
def _scatter_add(tgt, idx, src, axis=0):
    return tgt.clone().index_add_(axis, idx, src)
def _segment_sum(src, seg, n):
    out = torch.zeros((n,) + src.shape[1:], dtype=src.dtype)
    return out.index_add_(0, seg, src)
def _pad(x, pw):
    flat = tuple(v for pair in reversed(pw) for v in pair)
    return torch.nn.functional.pad(x, flat)

kernel_name = 'standalone__gqa_block_cached__sampling'

def setup_inputs():

    _w = (lambda a: (lambda t: t.to(torch.bfloat16) if t.is_floating_point() else t)(torch.as_tensor(a)))
    B, Sq, D = 8, 16, 448
    Hq, Hkv, Sk, Dh = 16, 8, 2048, 256
    assert Hq % Hkv == 0, (Hq, Hkv)
    return {
        "x": _w((lambda *s: torch.randn(*s, dtype=torch.bfloat16) * 0.8)(B, Sq, D)),
        "k_cache": _w((lambda *s: torch.randn(*s, dtype=torch.bfloat16) * 0.8)(B, Hkv, Sk, Dh)),
        "v_cache": _w((lambda *s: torch.randn(*s, dtype=torch.bfloat16) * 0.05)(B, Hkv, Sk, Dh)),
        "wq": _w((lambda *s: torch.randn(*s, dtype=torch.bfloat16) * 0.8)(D, Hq * Dh) * (D ** -0.5)),
        "wo": _w((lambda *s: torch.randn(*s, dtype=torch.bfloat16) * 0.05)(Hq * Dh, D) * ((Hq * Dh) ** -0.5)),
    }

def reference(x, k_cache, v_cache, wq, wo):
    B, Sq, D = x.shape
    Hq, Dh = 16, 256
    Hkv = k_cache.shape[1]
    rep = Hq // Hkv
    q = (lambda x, *d: x.permute(*d))((x @ wq).reshape(B, Sq, Hq, Dh), 0, 2, 1, 3)
    k = (lambda x, n, axis: torch.repeat_interleave(x, n, dim=axis))(k_cache, rep, axis=1)
    v = (lambda x, n, axis: torch.repeat_interleave(x, n, dim=axis))(v_cache, rep, axis=1)
    scores = torch.einsum("bhqd,bhkd->bhqk", q, k) * (Dh ** -0.5)
    p = _softmax(scores, axis=-1)
    o = torch.einsum("bhqk,bhkd->bhqd", p, v)
    return (lambda x, *d: x.permute(*d))(o, 0, 2, 1, 3).reshape(B, Sq, Hq * Dh) @ wo
```

```python
import sys, math

class Em:
    def __init__(self):
        self.L = []
        self.vm = []
        self.lg = []
    def __call__(self, s):
        self.L.append("    " + s)
    def label(self, s):
        self.L.append(s + ":")
    def c(self, s):
        self.L.append("    ; " + s)
    def vmi(self, tag, s):
        self(s); self.vm.append(tag)
    def lgi(self, tag, s):
        self(s); self.lg.append(tag)
    def _wait(self, lst, tag, name, mx):
        idx = None
        for i, t in enumerate(lst):
            if t == tag: idx = i
        if idx is None:
            return lst
        n = len(lst) - 1 - idx
        if n <= mx:
            self("s_waitcnt %s(%d)" % (name, n))
        else:
            raise Exception("too many outstanding for %s: %d" % (name, n))
        return lst[idx+1:]
    def vmw(self, tag):
        self.vm = self._wait(self.vm, tag, "vmcnt", 63)
    def lgw(self, tag):
        self.lg = self._wait(self.lg, tag, "lgkmcnt", 15)
    def vm0(self):
        self("s_waitcnt vmcnt(0)"); self.vm = []
    def lg0(self):
        self("s_waitcnt lgkmcnt(0)"); self.lg = []
    def nop(self, n):
        while n > 0:
            k = min(n, 16); self("s_nop %d" % (k-1)); n -= k
    def text(self):
        return "\n".join(self.L)

def vr(a, n=1): return "v%d" % a if n == 1 else "v[%d:%d]" % (a, a+n-1)
def ar(a, n=1): return "a%d" % a if n == 1 else "a[%d:%d]" % (a, a+n-1)
def sr(a, n=1): return "s%d" % a if n == 1 else "s[%d:%d]" % (a, a+n-1)

R = 30
RING = R*1024
PBASE = 4*RING
MAXB = PBASE + 32768
SUMB = MAXB + 1024
LDS_A = SUMB + 1024
WS_PART = 0
WS_STATS = 4 << 20
WS_OP2 = 5 << 20
WS_FLAG = 8 << 20
WS_TS = 9 << 20
SCALE = math.log2(math.e)/16.0

def f2u(x):
    import struct
    return struct.unpack("<I", struct.pack("<f", x))[0]

sX, sK, sV, sWQ, sWO, sOUT, sDBG, sWS = 4, 6, 8, 10, 12, 14, 16, 18
rK, rV, rWQ, rX, rWS, rWO, rOUT = 20, 24, 28, 32, 36, 40, 44
sW, sHKV, sSP, sB, sRING, sOFF, sT0, sT1, sT2, sT3 = 48, 49, 50, 51, 52, 53, 54, 55, 56, 57
sPLO, sPHI, sSC = 60, 61, 62
sTS = 64

def srd(e, r, ptr, off_s, size):
    if off_s is None:
        e("s_mov_b32 %s, %s" % (sr(r), sr(ptr)))
        e("s_mov_b32 %s, %s" % (sr(r+1), sr(ptr+1)))
    else:
        e("s_add_u32 %s, %s, %s" % (sr(r), sr(ptr), sr(off_s)))
        e("s_addc_u32 %s, %s, 0" % (sr(r+1), sr(ptr+1)))
    e("s_mov_b32 %s, 0x%x" % (sr(r+2), size))
    e("s_mov_b32 %s, 0x00020000" % sr(r+3))

def common_prologue(e, nwg, cfg):
    e("s_cmp_ge_u32 s2, %d" % nwg)
    e("s_cbranch_scc1 %s" % cfg['exit'])
    e("s_load_dwordx16 s[4:19], s[0:1], 0")
    e("v_lshrrev_b32 v1, 6, v0")
    e("v_and_b32 v0, 63, v0")
    e("s_and_b32 %s, s2, 7" % sr(sHKV))
    e("v_readfirstlane_b32 %s, v1" % sr(sW))
    e("s_lshr_b32 %s, s2, 3" % sr(sSP))
    e("s_and_b32 %s, %s, 3" % (sr(sSP), sr(sSP)))
    e("s_lshr_b32 %s, s2, 5" % sr(sB))
    e("s_mov_b32 %s, 0x05040100" % sr(sPLO))
    e("s_mov_b32 %s, 0x07060302" % sr(sPHI))

def ts(e, cfg, idx):
    if cfg.get('ts'):
        e("s_memrealtime %s" % sr(sTS + 2*idx, 2))

def ts_store(e, cfg, n):
    if not cfg.get('ts'): return
    e("s_waitcnt lgkmcnt(0)")
    e("s_lshl_b32 %s, s2, 2" % sr(sT0))
    e("s_add_u32 %s, %s, %s" % (sr(sT0), sr(sT0), sr(sW)))
    e("s_lshl_b32 %s, %s, 7" % (sr(sT0), sr(sT0)))
    e("s_add_u32 %s, %s, 0x%x" % (sr(sT0), sr(sT0), WS_TS))
    e("v_mov_b32 v1, %s" % sr(sT0))
    for i in range(n):
        e("v_mov_b32 v2, %s" % sr(sTS+2*i))
        e("v_mov_b32 v3, %s" % sr(sTS+2*i+1))
        e("global_store_dwordx2 v1, v[2:3], %s offset:%d" % (sr(sWS, 2), 8*i))

def wo_srd(e):
    e("s_lshl_b32 %s, %s, 3" % (sr(sT0), sr(sHKV)))
    e("s_add_u32 %s, %s, %s" % (sr(sT0), sr(sT0), sr(sW)))
    e("s_mul_i32 %s, %s, %d" % (sr(sT0), sr(sT0), 64*896))
    e("s_mul_i32 %s, %s, 224" % (sr(sT1), sr(sSP)))
    e("s_add_u32 %s, %s, %s" % (sr(sT0), sr(sT0), sr(sT1)))
    e("s_add_u32 %s, %s, %s" % (sr(rWO), sr(sWO), sr(sT0)))
    e("s_addc_u32 %s, %s, 0" % (sr(rWO+1), sr(sWO+1)))
    e("s_sub_u32 %s, %d, %s" % (sr(rWO+2), 4096*896, sr(sT0)))
    e("s_mov_b32 %s, 0x00020000" % sr(rWO+3))

def wo_vaddr(e, v, t0, t1):
    e("v_lshrrev_b32 %s, 4, v0" % vr(t0))
    e("v_and_b32 %s, 1, %s" % (vr(t1), vr(t0)))
    e("v_lshlrev_b32 %s, 8, %s" % (vr(t1), vr(t1)))
    e("v_lshrrev_b32 %s, 1, %s" % (vr(t0), vr(t0)))
    e("v_lshl_add_u32 %s, %s, 2, %s" % (vr(t1), vr(t0), vr(t1)))
    e("v_mul_u32_u24 %s, 896, %s" % (vr(t1), vr(t1)))
    e("v_and_b32 %s, 15, v0" % vr(t0))
    e("v_lshl_add_u32 %s, %s, 4, %s" % (vr(v), vr(t0), vr(t1)))

def wo_load(e, kstep, s, dst, vaddr):
    d, ee = kstep >> 1, kstep & 1
    off = (32*d + 16*ee + 8*(s >> 2) + (s & 3))*896
    e("s_mov_b32 %s, %d" % (sr(sOFF), off))
    e.vmi(("wo", kstep, s), "buffer_load_dwordx4 %s, %s, %s, %s offen" % (vr(dst, 4), vr(vaddr), sr(rWO, 4), sr(sOFF)))

def transpose8(e, raw, dst, cols=range(8)):
    for j in cols:
        for p in range(4):
            sel = sPHI if (j & 1) else sPLO
            e("v_perm_b32 %s, %s, %s, %s" % (vr(dst+4*j+p), vr(raw+4*(2*p+1)+(j >> 1)), vr(raw+4*(2*p)+(j >> 1)), sr(sel)))

def outproj_tail(e, cfg, OF, WOF, ACC, ldsbase, sc):
    for ks in range(4):
        for j in range(8):
            c = "0" if ks == 0 else vr(ACC+4*j, 4)
            e("v_mfma_f32_16x16x32_bf16 %s, %s, %s, %s" % (vr(ACC+4*j, 4), vr(WOF[ks]+4*j, 4), vr(OF+4*ks, 4), c))
    e("s_lshl_b32 %s, %s, 13" % (sr(sT0), sr(sW)))
    e("s_add_u32 %s, %s, %d" % (sr(sT0), sr(sT0), ldsbase))
    e("v_lshlrev_b32 v26, 4, v0")
    e("v_add_u32 v27, %s, v26" % sr(sT0))
    e.nop(6)
    for j in range(8):
        e.lgi(("opw", j), "ds_write_b128 v27, %s offset:%d" % (vr(ACC+4*j, 4), j*1024))
    e.lg0()
    e("s_barrier")
    e("s_lshl_b32 %s, %s, 11" % (sr(sT0), sr(sW)))
    e("s_add_u32 %s, %s, %d" % (sr(sT0), sr(sT0), ldsbase))
    e("v_add_u32 v27, %s, v26" % sr(sT0))
    T = ACC
    for jj in range(2):
        for w in range(4):
            e.lgi(("opr", jj, w), "ds_read_b128 %s, v27 offset:%d" % (vr(T+16*jj+4*w, 4), w*8192+jj*1024))
    e("s_lshl_b32 %s, %s, 2" % (sr(sT0), sr(sB)))
    e("s_add_u32 %s, %s, %s" % (sr(sT0), sr(sT0), sr(sSP)))
    e("s_lshl_b32 %s, %s, 3" % (sr(sT0), sr(sT0)))
    e("s_add_u32 %s, %s, %s" % (sr(sT0), sr(sT0), sr(sHKV)))
    e("s_lshl_b32 %s, %s, 13" % (sr(sT0), sr(sT0)))
    e("s_lshl_b32 %s, %s, 11" % (sr(sT1), sr(sW)))
    e("s_add_u32 %s, %s, %s" % (sr(sT0), sr(sT0), sr(sT1)))
    e("s_add_u32 %s, %s, 0x%x" % (sr(sT0), sr(sT0), WS_OP2))
    for jj in range(2):
        e.lgw(("opr", jj, 3))
        b0 = T+16*jj
        for k in range(4):
            e("v_add_f32 %s, %s, %s" % (vr(b0+k), vr(b0+k), vr(b0+4+k)))
            e("v_add_f32 %s, %s, %s" % (vr(b0+8+k), vr(b0+8+k), vr(b0+12+k)))
        for k in range(4):
            e("v_add_f32 %s, %s, %s" % (vr(b0+k), vr(b0+k), vr(b0+8+k)))
        e.vmi(("op2", jj), "buffer_store_dwordx4 %s, v26, %s, %s offen offset:%d%s" % (vr(b0, 4), sr(rWS, 4), sr(sT0), jj*1024, sc))

def final_reduce(e, cfg, sc, T=32):
    e("v_and_b32 v26, 7, v0")
    e("v_bfe_u32 v27, v0, 3, 2")
    e("v_lshrrev_b32 v28, 5, v0")
    e("s_lshl_b32 %s, %s, 1" % (sr(sT0), sr(sHKV)))
    e("v_add_u32 v28, %s, v28" % sr(sT0))
    e("v_lshlrev_b32 v29, 10, v26")
    e("v_lshl_add_u32 v30, v27, 4, v28")
    e("v_lshl_add_u32 v29, v30, 4, v29")
    e("s_lshl_b32 %s, %s, 2" % (sr(sT0), sr(sB)))
    e("s_add_u32 %s, %s, %s" % (sr(sT0), sr(sT0), sr(sSP)))
    e("s_lshl_b32 %s, %s, 16" % (sr(sT0), sr(sT0)))
    e("s_add_u32 %s, %s, 0x%x" % (sr(sT0), sr(sT0), WS_OP2))
    for p in range(8):
        e.vmi(("fr", p), "buffer_load_dwordx4 %s, v29, %s, %s offen%s" % (vr(T+4*p, 4), sr(rWS, 4), sr(sT0), sc))
        if p < 7: e("s_add_u32 %s, %s, 8192" % (sr(sT0), sr(sT0)))
    e("v_mul_u32_u24 v30, 896, v28")
    e("v_lshl_add_u32 v30, v27, 6, v30")
    e("v_lshl_add_u32 v30, v26, 1, v30")
    e("s_mul_i32 %s, %s, 14336" % (sr(sT1), sr(sB)))
    e("s_mul_i32 %s, %s, 224" % (sr(sT2), sr(sSP)))
    e("s_add_u32 %s, %s, %s" % (sr(sT1), sr(sT1), sr(sT2)))
    e("v_add_u32 v30, %s, v30" % sr(sT1))
    e("v_mov_b32 v31, 0x40000000")
    e("v_cmp_eq_u32 vcc, 3, v27")
    e.nop(2)
    e("v_cndmask_b32 v31, v30, v31, vcc")
    e.vmw(("fr", 3))
    for k in range(4):
        e("v_add_f32 %s, %s, %s" % (vr(T+k), vr(T+k), vr(T+4+k)))
        e("v_add_f32 %s, %s, %s" % (vr(T+8+k), vr(T+8+k), vr(T+12+k)))
    e.vmw(("fr", 7))
    for k in range(4):
        e("v_add_f32 %s, %s, %s" % (vr(T+16+k), vr(T+16+k), vr(T+20+k)))
        e("v_add_f32 %s, %s, %s" % (vr(T+24+k), vr(T+24+k), vr(T+28+k)))
    for k in range(4):
        e("v_add_f32 %s, %s, %s" % (vr(T+k), vr(T+k), vr(T+8+k)))
        e("v_add_f32 %s, %s, %s" % (vr(T+16+k), vr(T+16+k), vr(T+24+k)))
    for k in range(4):
        e("v_add_f32 %s, %s, %s" % (vr(T+k), vr(T+k), vr(T+16+k)))
    e("v_cvt_pk_bf16_f32 %s, %s, %s" % (vr(T+4), vr(T), vr(T+1)))
    e("v_cvt_pk_bf16_f32 %s, %s, %s" % (vr(T+5), vr(T+2), vr(T+3)))
    e("v_lshrrev_b32 %s, 16, %s" % (vr(T+6), vr(T+4)))
    e("v_lshrrev_b32 %s, 16, %s" % (vr(T+7), vr(T+5)))
    e("buffer_store_short %s, v30, %s, 0 offen" % (vr(T+4), sr(rOUT, 4)))
    e("buffer_store_short %s, v30, %s, 0 offen offset:16" % (vr(T+6), sr(rOUT, 4)))
    e("buffer_store_short %s, v31, %s, 0 offen offset:32" % (vr(T+5), sr(rOUT, 4)))
    e("buffer_store_short %s, v31, %s, 0 offen offset:48" % (vr(T+7), sr(rOUT, 4)))
```

```python
from gen import *

def k_dma(e, u, nt=""):
    slot = u % R
    e("s_add_u32 m0, %s, %d" % (sr(sRING), slot*1024))
    if u < 64:
        e("s_mov_b32 %s, %d" % (sr(sOFF), u*1024))
        e.vmi(("u", u), "buffer_load_dwordx4 %s, %s, %s offen%s lds" % (vr(1 + (u & 7)), sr(rK, 4), sr(sOFF), nt))
    else:
        e("s_mov_b32 %s, %d" % (sr(sOFF), (u-64)*4096))
        e.vmi(("u", u), "buffer_load_dwordx4 v9, %s, %s offen%s lds" % (sr(rV, 4), sr(sOFF), nt))

def attn_setup(e, cfg):
    e("v_lshrrev_b32 v26, 5, v0")
    e("v_and_b32 v27, 31, v0")
    e("v_xor_b32 v28, v27, v26")
    e("v_lshlrev_b32 v28, 4, v28")
    e("v_lshl_add_u32 v1, v26, 9, v28")
    for j in range(1, 8):
        e("v_xor_b32 %s, %d, v1" % (vr(1+j), j << 5))
    e("v_lshrrev_b32 v28, 3, v0")
    e("v_and_b32 v29, 7, v0")
    e("v_bfe_u32 v30, v0, 4, 1")
    e("v_lshlrev_b32 v30, 2, v30")
    e("v_xor_b32 v29, v29, v30")
    e("v_lshlrev_b32 v29, 4, v29")
    e("v_lshl_add_u32 v9, v28, 9, v29")
    e("s_lshl_b32 %s, %s, 7" % (sr(sT0), sr(sW)))
    e("v_add_u32 v9, %s, v9" % sr(sT0))
    e("s_mul_i32 %s, %s, %d" % (sr(sRING), sr(sW), RING))
    e("v_lshrrev_b32 v28, 5, v0")
    e("v_bfe_u32 v29, v0, 2, 2")
    e("v_lshl_add_u32 v28, v28, 2, v29")
    e("v_bfe_u32 v29, v28, 1, 1")
    e("v_lshlrev_b32 v29, 6, v29")
    e("v_lshl_add_u32 v29, v28, 7, v29")
    e("v_bfe_u32 v30, v0, 4, 1")
    e("v_lshl_add_u32 v29, v30, 5, v29")
    e("v_and_b32 v30, 3, v0")
    e("v_lshl_add_u32 v29, v30, 3, v29")
    e("v_add_u32 v10, %s, v29" % sr(sRING))
    e("v_xor_b32 v11, 64, v10")
    e("v_lshlrev_b32 v28, 4, v0")
    e("v_add_u32 v12, %d, v28" % PBASE)
    e("s_lshl_b32 %s, %s, 13" % (sr(sT0), sr(sW)))
    e("v_add_u32 v13, %s, v12" % sr(sT0))
    e("v_and_b32 v28, 15, v27")
    e("v_xor_b32 v28, v28, v26")
    e("v_lshlrev_b32 v28, 4, v28")
    e("v_and_b32 v29, 1, v27")
    e("v_lshl_add_u32 v28, v29, 9, v28")
    e("v_add_u32 v16, %s, v28" % sr(sRING))
    e("v_lshrrev_b32 v17, 1, v27")
    e("v_lshrrev_b32 v28, 4, v0")
    e("v_and_b32 v29, 15, v0")
    e("v_lshlrev_b32 v30, 16, v28")
    e("v_lshl_add_u32 v30, v29, 4, v30")
    e("s_lshl_b32 %s, %s, 8" % (sr(sT0), sr(sW)))
    e("v_add_u32 v14, %s, v30" % sr(sT0))
    e("v_mul_u32_u24 v30, 896, v29")
    e("v_lshl_add_u32 v15, v28, 4, v30")

def attn_srds(e):
    e("s_lshl_b32 %s, %s, 3" % (sr(sT0), sr(sB)))
    e("s_add_u32 %s, %s, %s" % (sr(sT0), sr(sT0), sr(sHKV)))
    e("s_lshl_b32 %s, %s, 20" % (sr(sT0), sr(sT0)))
    e("s_lshl_b32 %s, %s, 18" % (sr(sT1), sr(sSP)))
    e("s_add_u32 %s, %s, %s" % (sr(sT0), sr(sT0), sr(sT1)))
    srd(e, rV, sV, sT0, 1 << 18)
    e("s_lshl_b32 %s, %s, 16" % (sr(sT1), sr(sW)))
    e("s_add_u32 %s, %s, %s" % (sr(sT0), sr(sT0), sr(sT1)))
    srd(e, rK, sK, sT0, 1 << 16)
    e("s_lshl_b32 %s, %s, 10" % (sr(sT0), sr(sHKV)))
    srd(e, rWQ, sWQ, sT0, 447*8192 + 1024)
    e("s_mul_i32 %s, %s, 14336" % (sr(sT0), sr(sB)))
    srd(e, rX, sX, sT0, 14336)
    srd(e, rWS, sWS, None, 1 << 28)
    srd(e, rOUT, sOUT, None, 8*16*448*2)

def qproj(e, cfg):
    D = cfg.get('D', 5)
    RAW, ACC, TB = 96, 32, 64
    pre = cfg.get('kpre', 0)
    per = cfg.get('kper', [2]*14)
    nt = cfg.get('nt', "")
    nu = [0]
    def kd(n):
        for _ in range(n):
            if nu[0] < R:
                k_dma(e, nu[0], nt); nu[0] += 1
    def wql(ks):
        for r in range(8):
            e("s_mov_b32 %s, %d" % (sr(sOFF), (32*ks+r)*8192))
            e.vmi(("wq", ks, r), "buffer_load_dwordx4 %s, v14, %s, %s offen" % (vr(RAW+32*(ks % D)+4*r, 4), sr(rWQ, 4), sr(sOFF)))
    kd(pre)
    for ks in range(14):
        if ks == 2:
            pass
        e.vmi(("x", ks), "buffer_load_dwordx4 %s, v15, %s, 0 offen offset:%d" % (ar(4*ks, 4), sr(rX, 4), ks*64))
    for ks in range(D):
        wql(ks)
    kd(cfg.get('kmid', 0))
    def perms(raw, c):
        buf = TB + 8*(c & 1)
        for jj in range(2):
            j = 2*c+jj
            for p in range(4):
                sel = sPHI if (j & 1) else sPLO
                e("v_perm_b32 %s, %s, %s, %s" % (vr(buf+4*jj+p), vr(raw+4*(2*p+1)+c), vr(raw+4*(2*p)+c), sr(sel)))
    def mf(ks, c):
        buf = TB + 8*(c & 1)
        for jj in range(2):
            j = 2*c+jj
            cc = "0" if ks == 0 else vr(ACC+4*j, 4)
            e("v_mfma_f32_16x16x32_bf16 %s, %s, %s, %s" % (vr(ACC+4*j, 4), vr(buf+4*jj, 4), ar(4*ks, 4), cc))
    for ks in range(14):
        raw = RAW+32*(ks % D)
        e.vmw(("wq", ks, 7))
        perms(raw, 0); perms(raw, 1); mf(ks, 0); perms(raw, 2); mf(ks, 1); perms(raw, 3); mf(ks, 2)
        if ks + D < 14: wql(ks+D)
        kd(per[ks])
        e.nop(1)
        mf(ks, 3)
    kd(R)
    e("s_and_b32 %s, %s, 1" % (sr(sT0), sr(sW)))
    e("s_lshl_b32 %s, %s, 13" % (sr(sT0), sr(sT0)))
    e("s_lshr_b32 %s, %s, 1" % (sr(sT1), sr(sW)))
    e("s_lshl_b32 %s, %s, 8" % (sr(sT1), sr(sT1)))
    e("s_add_u32 %s, %s, %s" % (sr(sT0), sr(sT0), sr(sT1)))
    e("s_add_u32 %s, %s, %d" % (sr(sT0), sr(sT0), PBASE))
    e("v_lshrrev_b32 v28, 4, v0")
    e("v_and_b32 v29, 15, v0")
    e("v_lshlrev_b32 v28, 11, v28")
    e("v_lshl_add_u32 v28, v29, 4, v28")
    e("v_add_u32 v28, %s, v28" % sr(sT0))
    e.nop(4)
    for jj in range(4):
        for k in range(4):
            e("v_cvt_pk_bf16_f32 %s, %s, %s" % (vr(TB+4*jj+k), vr(ACC+4*(2*k)+jj), vr(ACC+4*(2*k+1)+jj)))
    for jj in range(4):
        e.lgi(("qw", jj), "ds_write_b128 v28, %s offset:%d" % (vr(TB+4*jj, 4), (jj >> 1)*1024+(jj & 1)*512))
    e.lg0()
    e("s_barrier")
    for s in range(16):
        if s == 12: e.lgw(("qr", 3))
        e.lgi(("qr", s), "ds_read_b128 %s, v12 offset:%d" % (ar(64+4*s, 4), s*1024))

def kphase(e, cfg):
    S0, KF = 32, 96
    nt = cfg.get('nt', "")
    for T in range(4):
        e("v_add_u32 v26, %d, v17" % ((16*T) % R))
        e("v_cmp_le_u32 vcc, %d, v26" % R)
        e("v_subrev_u32 v27, %d, v26" % R)
        e("v_cndmask_b32 v26, v26, v27, vcc")
        e("v_lshl_add_u32 v18, v26, 10, v16")
        for j in range(1, 8):
            e("v_xor_b32 %s, %d, v18" % (vr(18+j), j << 5))
        e.vmw(("u", 16*T+15))
        def rd(s):
            e.lgi(("kr", T, s), "ds_read_b128 %s, %s offset:%d" % (vr(KF+4*(s & 7), 4), vr(18+(s & 7)), (s >> 3)*256))
        if T == 0:
            e.lg0()
        for s in range(8): rd(s)
        for s in range(16):
            e.lgw(("kr", T, s))
            cc = "0" if s == 0 else vr(S0+16*T, 16)
            e("v_mfma_f32_32x32x16_bf16 %s, %s, %s, %s" % (vr(S0+16*T, 16), vr(KF+4*(s & 7), 4), ar(64+4*s, 4), cc))
            if s+8 < 16: rd(s+8)
        for u in range(16*T+R, 16*T+R+16):
            k_dma(e, u, nt)
        if cfg.get('wo_pref') and T == 0:
            cfg['wo_pref'](e)

def softmax(e, cfg):
    S0 = 32
    e.nop(12)
    e("v_max3_f32 v26, %s, %s, %s" % (vr(S0), vr(S0+1), vr(S0+2)))
    e("v_max3_f32 v27, %s, %s, %s" % (vr(S0+3), vr(S0+4), vr(S0+5)))
    k = 6
    tog = 0
    while k < 64:
        d = 26 + tog
        if k+1 < 64:
            e("v_max3_f32 %s, %s, %s, %s" % (vr(d), vr(d), vr(S0+k), vr(S0+k+1))); k += 2
        else:
            e("v_max_f32 %s, %s, %s" % (vr(d), vr(d), vr(S0+k))); k += 1
        tog ^= 1
    e("v_max_f32 v26, v26, v27")
    e("s_lshl_b32 %s, %s, 8" % (sr(sT0), sr(sW)))
    e("s_add_u32 %s, %s, %d" % (sr(sT0), sr(sT0), MAXB))
    e("v_lshlrev_b32 v28, 2, v0")
    e("v_add_u32 v29, %s, v28" % sr(sT0))
    e.lgi("mw", "ds_write_b32 v29, v26")
    e("v_and_b32 v30, 31, v0")
    e("v_lshlrev_b32 v30, 2, v30")
    e("v_add_u32 v30, %d, v30" % MAXB)
    e.lg0()
    e("s_barrier")
    for k in range(4):
        e.lgi(("mr", k), "ds_read2_b32 %s, v30 offset0:%d offset1:%d" % (vr(96+2*k, 2), 64*k, 64*k+32))
    e.lg0()
    e("v_max3_f32 v26, v96, v97, v98")
    e("v_max3_f32 v27, v99, v100, v101")
    e("v_max3_f32 v26, v26, v102, v103")
    e("v_max_f32 v26, v26, v27")
    e("s_mov_b32 %s, 0x%08x" % (sr(sSC), f2u(SCALE)))
    e("v_mul_f32 v31, %s, v26" % sr(sSC))
    PK = 96
    e("v_mov_b32 v26, 0")
    e("v_mov_b32 v27, 0")
    for T in range(4):
        for ee in range(2):
            b0 = S0+16*T+8*ee
            for k in range(8):
                e("v_fma_f32 %s, %s, %s, -v31" % (vr(b0+k), vr(b0+k), sr(sSC)))
            for k in range(8):
                e("v_exp_f32 %s, %s" % (vr(b0+k), vr(b0+k)))
            pk = PK + 4*((2*T+ee) & 1)
            for k in range(4):
                e("v_add_f32 v26, v26, %s" % vr(b0+2*k))
                e("v_add_f32 v27, v27, %s" % vr(b0+2*k+1))
                e("v_cvt_pk_bf16_f32 %s, %s, %s" % (vr(pk+k), vr(b0+2*k), vr(b0+2*k+1)))
            if len(e.lg) >= 2: e.lgw(e.lg[-2]) if False else None
            e.lgi(("pw", T, ee), "ds_write_b128 v13, %s offset:%d" % (vr(pk, 4), (2*T+ee)*1024))
            if (T, ee) != (0, 0):
                prev = (T, 0) if ee == 1 else (T-1, 1)
                e.lgw(("pw",)+prev)
    e("v_add_f32 v26, v26, v27")
    e("v_add_u32 v29, %d, v29" % (SUMB-MAXB))
    e.lgi("sw", "ds_write_b32 v29, v26")
    e("v_add_u32 v30, %d, v30" % (SUMB-MAXB))
    e.lg0()
    e("s_barrier")
    for k in range(4):
        e.lgi(("sr", k), "ds_read2_b32 %s, v30 offset0:%d offset1:%d" % (vr(96+2*k, 2), 64*k, 64*k+32))
    e.lg0()
    e("v_add_f32 v96, v96, v97")
    e("v_add_f32 v98, v98, v99")
    e("v_add_f32 v100, v100, v101")
    e("v_add_f32 v102, v102, v103")
    e("v_add_f32 v96, v96, v98")
    e("v_add_f32 v100, v100, v102")
    e("v_add_f32 v30, v96, v100")

OACC = 32
def vphase(e, cfg):
    VF, PF = 64, 80
    nt = cfg.get('nt', "")
    def reads(t):
        vb = VF + 8*(t & 1)
        pb = PF + 4*(t & 1)
        e.lgi(("pr", t), "ds_read_b128 %s, v12 offset:%d" % (vr(pb, 4), t*1024))
        for d in range(2):
            for uu in range(2):
                slot = (64+2*t+uu) % R
                e.lgi(("vr", t, d, uu), "ds_read_b64_tr_b16 %s, %s offset:%d" % (vr(vb+4*d+2*uu, 2), vr(10+d), slot*1024))
    e.vmw(("u", 65))
    reads(0)
    for t in range(32):
        if t+1 < 32:
            e.vmw(("u", 64+2*(t+1)+1))
            reads(t+1)
        e.lgw(("vr", t, 1, 1))
        vb = VF + 8*(t & 1); pb = PF + 4*(t & 1)
        for d in range(2):
            cc = "0" if t == 0 else vr(OACC+16*d, 16)
            e("v_mfma_f32_32x32x16_bf16 %s, %s, %s, %s" % (vr(OACC+16*d, 16), vr(vb+4*d, 4), vr(pb, 4), cc))
        for uu in range(2):
            u = 64+2*t+uu+R
            if u < 128: k_dma(e, u, nt)
        if cfg.get('vhook'): cfg['vhook'](e, t)

def part_store(e, cfg, sc):
    e("v_rcp_f32 v29, v30")
    e("s_lshl_b32 %s, s2, 14" % sr(sT0))
    e("s_lshl_b32 %s, %s, 12" % (sr(sT1), sr(sW)))
    e("s_add_u32 %s, %s, %s" % (sr(sT0), sr(sT0), sr(sT1)))
    e("v_lshlrev_b32 v26, 4, v0")
    e.nop(8)
    for k in range(32):
        e("v_mul_f32 %s, %s, v29" % (vr(OACC+k), vr(OACC+k)))
    for k in range(16):
        e("v_cvt_pk_bf16_f32 %s, %s, %s" % (vr(64+k), vr(OACC+2*k), vr(OACC+2*k+1)))
    for r4 in range(4):
        e.vmi(("ps", r4), "buffer_store_dwordx4 %s, v26, %s, %s offen offset:%d%s" % (vr(64+4*r4, 4), sr(rWS, 4), sr(sT0), r4*1024, sc))
    e("s_cmp_lg_u32 %s, 0" % sr(sW))
    e("s_cbranch_scc1 L_nostats%d" % cfg.get('uid', 0))
    e("s_lshl_b32 %s, s2, 8" % sr(sT0))
    e("s_add_u32 %s, %s, 0x%x" % (sr(sT0), sr(sT0), WS_STATS))
    e("v_and_b32 v27, 31, v0")
    e("v_lshlrev_b32 v27, 3, v27")
    e("v_mov_b32 v28, v31")
    e("v_mov_b32 v29, v30")
    e("buffer_store_dwordx2 v[28:29], v27, %s, %s offen%s" % (sr(rWS, 4), sr(sT0), sc))
    e.label("L_nostats%d" % cfg.get('uid', 0))

def combine(e, cfg, sc, PJ=(64, 80, 224, 240), OF=64):
    e("s_lshl_b32 %s, %s, 5" % (sr(sT0), sr(sB)))
    e("s_add_u32 %s, %s, %s" % (sr(sT0), sr(sT0), sr(sHKV)))
    e("s_lshl_b32 %s, %s, 8" % (sr(sT1), sr(sT0)))
    e("s_add_u32 %s, %s, 0x%x" % (sr(sT1), sr(sT1), WS_STATS))
    e("v_and_b32 v27, 31, v0")
    e("v_lshlrev_b32 v27, 3, v27")
    for j in range(4):
        e.vmi(("st", j), "buffer_load_dwordx2 %s, v27, %s, %s offen offset:%d%s" % (vr(18+2*j, 2), sr(rWS, 4), sr(sT1), j*2048, sc))
    e("s_lshl_b32 %s, %s, 14" % (sr(sT0), sr(sT0)))
    e("s_lshl_b32 %s, %s, 12" % (sr(sT1), sr(sW)))
    e("s_add_u32 %s, %s, %s" % (sr(sT0), sr(sT0), sr(sT1)))
    e("v_lshlrev_b32 v26, 4, v0")
    for j in range(4):
        for r4 in range(4):
            e.vmi(("pl", j, r4), "buffer_load_dwordx4 %s, v26, %s, %s offen offset:%d%s" % (vr(PJ[j]+4*r4, 4), sr(rWS, 4), sr(sT0), r4*1024, sc))
        if j < 3: e("s_add_u32 %s, %s, %d" % (sr(sT0), sr(sT0), 8*16384))
    e.vmw(("st", 3))
    e("v_max3_f32 v28, v18, v20, v22")
    e("v_max_f32 v28, v28, v24")
    for j in range(4):
        e("v_sub_f32 %s, %s, v28" % (vr(18+2*j), vr(18+2*j)))
    for j in range(4):
        e("v_exp_f32 %s, %s" % (vr(18+2*j), vr(18+2*j)))
    e.nop(1)
    for j in range(4):
        e("v_mul_f32 %s, %s, %s" % (vr(18+2*j), vr(18+2*j), vr(19+2*j)))
    e("v_add_f32 v28, v18, v20")
    e("v_add_f32 v29, v22, v24")
    e("v_add_f32 v28, v28, v29")
    e("v_rcp_f32 v28, v28")
    e.nop(1)
    for j in range(4):
        e("v_mul_f32 %s, %s, v28" % (vr(18+2*j), vr(18+2*j)))
    e("s_mov_b32 %s, 0xffff0000" % sr(sT2))
    for j in range(4):
        e.vmw(("pl", j, 3))
        wj = vr(18+2*j)
        for k in range(16):
            src = vr(PJ[j]+k)
            e("v_lshlrev_b32 v28, 16, %s" % src)
            e("v_and_b32 v29, %s, %s" % (sr(sT2), src))
            if j == 0:
                e("v_mul_f32 %s, v28, %s" % (vr(32+2*k), wj))
                e("v_mul_f32 %s, v29, %s" % (vr(32+2*k+1), wj))
            else:
                e("v_fmac_f32 %s, v28, %s" % (vr(32+2*k), wj))
                e("v_fmac_f32 %s, v29, %s" % (vr(32+2*k+1), wj))
    for k in range(16):
        e("v_cvt_pk_bf16_f32 %s, %s, %s" % (vr(OF+k), vr(32+2*k), vr(32+2*k+1)))

HEAD = """.amdgcn_target "amdgcn-amd-amdhsa--gfx950"
.text
"""
def kernel_text(name, body):
    return ".globl %s\n.p2align 8\n.type %s,@function\n%s:\n%s\n" % (name, name, name, body)
def kd_text(name, nv, acc):
    return """.amdhsa_kernel %s
  .amdhsa_next_free_vgpr %d
  .amdhsa_next_free_sgpr 102
  .amdhsa_accum_offset %d
  .amdhsa_group_segment_fixed_size 0
  .amdhsa_kernarg_size 64
  .amdhsa_user_sgpr_count 2
  .amdhsa_user_sgpr_kernarg_segment_ptr 1
  .amdhsa_system_sgpr_workgroup_id_x 1
.end_amdhsa_kernel
""" % (name, nv, acc)

HDR = open("standalone__gqa_block_cached__sampling.s.ref").read().split("; Override launch")[0]


WOF = (96, 128, 160, 192)
RAWO = 128
def wo_transposes(e, ks):
    e.vmw(("wo", ks, 7))
    transpose8(e, RAWO+32*ks, WOF[ks])

def build_v1(cfg):
    name = "standalone__gqa_block_cached__sampling_kernel"
    e = Em(); c = dict(cfg); c['exit'] = "L_exitA"; c['uid'] = 0
    ts(e, c, 0)
    common_prologue(e, 256, c)
    attn_setup(e, c)
    e("s_waitcnt lgkmcnt(0)")
    attn_srds(e)
    ts(e, c, 1)
    qproj(e, c)
    ts(e, c, 2)
    kphase(e, c)
    ts(e, c, 3)
    softmax(e, c)
    ts(e, c, 4)
    vphase(e, c)
    ts(e, c, 5)
    part_store(e, c, "")
    e.vm0()
    ts(e, c, 6)
    ts_store(e, c, 7)
    e.label("L_exitA")
    e("s_endpgm")
    ka = e.text()
    e = Em(); c = dict(cfg); c['exit'] = "L_exitB"; c['uid'] = 1; c['ts'] = False
    common_prologue(e, 256, c)
    wo_vaddr(e, 17, 28, 29)
    e("s_waitcnt lgkmcnt(0)")
    srd(e, rWS, sWS, None, 1 << 28)
    wo_srd(e)
    for ks in range(4):
        for s in range(8):
            wo_load(e, ks, s, RAWO+32*ks+4*s, 17)
    combine(e, c, "", PJ=(64, 80, 96, 112))
    for ks in range(4): wo_transposes(e, ks)
    e.nop(2)
    outproj_tail(e, c, 64, WOF, 32, 0, "")
    e.vm0()
    e.label("L_exitB")
    e("s_endpgm")
    kb = e.text()
    e = Em(); c = dict(cfg); c['exit'] = "L_exitC"; c['uid'] = 2; c['ts'] = False
    common_prologue(e, 256, c)
    e("s_waitcnt lgkmcnt(0)")
    srd(e, rWS, sWS, None, 1 << 28)
    srd(e, rOUT, sOUT, None, 8*16*448*2)
    final_reduce(e, c, "")
    e.vm0()
    e.label("L_exitC")
    e("s_endpgm")
    kc = e.text()
    txt = HDR
    txt += "; @launch kernel=%s grid=(256,1,1) block=(256,1,1) lds=%d\n" % (name, LDS_A)
    txt += "; @launch kernel=gqa_b_kernel grid=(256,1,1) block=(256,1,1) lds=32768\n"
    txt += "; @launch kernel=gqa_c_kernel grid=(256,1,1) block=(64,1,1) lds=0\n"
    txt += HEAD + kernel_text(name, ka) + kernel_text("gqa_b_kernel", kb) + kernel_text("gqa_c_kernel", kc)
    txt += '.section .rodata,"a"\n.p2align 6\n' + kd_text(name, 512, 256) + ".p2align 6\n" + kd_text("gqa_b_kernel", 256, 256) + ".p2align 6\n" + kd_text("gqa_c_kernel", 72, 72)
    return txt

if __name__ == "__main__":
    import json
    cfg = json.loads(sys.argv[2]) if len(sys.argv) > 2 else {}
    open(sys.argv[1], "w").write(globals()["build_" + cfg.get("ver", "v1")](cfg))
```

```python
from gen import *

def k_dma(e, u, nt=""):
    slot = u % R
    e("s_add_u32 m0, %s, %d" % (sr(sRING), slot*1024))
    if u < 64:
        e("s_mov_b32 %s, %d" % (sr(sOFF), u*1024))
        e.vmi(("u", u), "buffer_load_dwordx4 %s, %s, %s offen%s lds" % (vr(1 + (u & 7)), sr(rK, 4), sr(sOFF), nt))
    else:
        e("s_mov_b32 %s, %d" % (sr(sOFF), (u-64)*4096))
        e.vmi(("u", u), "buffer_load_dwordx4 v9, %s, %s offen%s lds" % (sr(rV, 4), sr(sOFF), nt))

def attn_setup(e, cfg):
    e("v_lshrrev_b32 v26, 5, v0")
    e("v_and_b32 v27, 31, v0")
    e("v_xor_b32 v28, v27, v26")
    e("v_lshlrev_b32 v28, 4, v28")
    e("v_lshl_add_u32 v1, v26, 9, v28")
    for j in range(1, 8):
        e("v_xor_b32 %s, %d, v1" % (vr(1+j), j << 5))
    e("v_lshrrev_b32 v28, 3, v0")
    e("v_and_b32 v29, 7, v0")
    e("v_bfe_u32 v30, v0, 4, 1")
    e("v_lshlrev_b32 v30, 2, v30")
    e("v_xor_b32 v29, v29, v30")
    e("v_lshlrev_b32 v29, 4, v29")
    e("v_lshl_add_u32 v9, v28, 9, v29")
    e("s_lshl_b32 %s, %s, 7" % (sr(sT0), sr(sW)))
    e("v_add_u32 v9, %s, v9" % sr(sT0))
    e("s_mul_i32 %s, %s, %d" % (sr(sRING), sr(sW), RING))
    e("v_lshrrev_b32 v28, 5, v0")
    e("v_bfe_u32 v29, v0, 2, 2")
    e("v_lshl_add_u32 v28, v28, 2, v29")
    e("v_bfe_u32 v29, v28, 1, 1")
    e("v_lshlrev_b32 v29, 6, v29")
    e("v_lshl_add_u32 v29, v28, 7, v29")
    e("v_bfe_u32 v30, v0, 4, 1")
    e("v_lshl_add_u32 v29, v30, 5, v29")
    e("v_and_b32 v30, 3, v0")
    e("v_lshl_add_u32 v29, v30, 3, v29")
    e("v_add_u32 v10, %s, v29" % sr(sRING))
    e("v_xor_b32 v11, 64, v10")
    e("v_lshlrev_b32 v28, 4, v0")
    e("v_add_u32 v12, %d, v28" % PBASE)
    e("s_lshl_b32 %s, %s, 13" % (sr(sT0), sr(sW)))
    e("v_add_u32 v13, %s, v12" % sr(sT0))
    e("v_and_b32 v28, 15, v27")
    e("v_xor_b32 v28, v28, v26")
    e("v_lshlrev_b32 v28, 4, v28")
    e("v_and_b32 v29, 1, v27")
    e("v_lshl_add_u32 v28, v29, 9, v28")
    e("v_add_u32 v16, %s, v28" % sr(sRING))
    e("v_lshrrev_b32 v17, 1, v27")
    e("v_lshrrev_b32 v28, 4, v0")
    e("v_and_b32 v29, 15, v0")
    e("v_lshlrev_b32 v30, 16, v28")
    e("v_lshl_add_u32 v30, v29, 4, v30")
    e("s_lshl_b32 %s, %s, 8" % (sr(sT0), sr(sW)))
    e("v_add_u32 v14, %s, v30" % sr(sT0))
    e("v_mul_u32_u24 v30, 896, v29")
    e("v_lshl_add_u32 v15, v28, 4, v30")

def attn_srds(e):
    e("s_lshl_b32 %s, %s, 3" % (sr(sT0), sr(sB)))
    e("s_add_u32 %s, %s, %s" % (sr(sT0), sr(sT0), sr(sHKV)))
    e("s_lshl_b32 %s, %s, 20" % (sr(sT0), sr(sT0)))
    e("s_lshl_b32 %s, %s, 18" % (sr(sT1), sr(sSP)))
    e("s_add_u32 %s, %s, %s" % (sr(sT0), sr(sT0), sr(sT1)))
    srd(e, rV, sV, sT0, 1 << 18)
    e("s_lshl_b32 %s, %s, 16" % (sr(sT1), sr(sW)))
    e("s_add_u32 %s, %s, %s" % (sr(sT0), sr(sT0), sr(sT1)))
    srd(e, rK, sK, sT0, 1 << 16)
    e("s_lshl_b32 %s, %s, 10" % (sr(sT0), sr(sHKV)))
    srd(e, rWQ, sWQ, sT0, 447*8192 + 1024)
    e("s_mul_i32 %s, %s, 14336" % (sr(sT0), sr(sB)))
    srd(e, rX, sX, sT0, 14336)
    srd(e, rWS, sWS, None, 1 << 28)
    srd(e, rOUT, sOUT, None, 8*16*448*2)

def qproj(e, cfg):
    D = cfg.get('D', 5)
    RAW, ACC, TB = 96, 32, 64
    pre = cfg.get('kpre', 0)
    per = cfg.get('kper', [2]*14)
    nt = cfg.get('nt', "")
    nu = [0]
    def kd(n):
        for _ in range(n):
            if nu[0] < R:
                k_dma(e, nu[0], nt); nu[0] += 1
    def wql(ks):
        for r in range(8):
            e("s_mov_b32 %s, %d" % (sr(sOFF), (32*ks+r)*8192))
            e.vmi(("wq", ks, r), "buffer_load_dwordx4 %s, v14, %s, %s offen" % (vr(RAW+32*(ks % D)+4*r, 4), sr(rWQ, 4), sr(sOFF)))
    kd(pre)
    for ks in range(14):
        if ks == 2:
            pass
        e.vmi(("x", ks), "buffer_load_dwordx4 %s, v15, %s, 0 offen offset:%d" % (ar(4*ks, 4), sr(rX, 4), ks*64))
    for ks in range(D):
        wql(ks)
    kd(cfg.get('kmid', 0))
    def perms(raw, c):
        buf = TB + 8*(c & 1)
        for jj in range(2):
            j = 2*c+jj
            for p in range(4):
                sel = sPHI if (j & 1) else sPLO
                e("v_perm_b32 %s, %s, %s, %s" % (vr(buf+4*jj+p), vr(raw+4*(2*p+1)+c), vr(raw+4*(2*p)+c), sr(sel)))
    def mf(ks, c):
        buf = TB + 8*(c & 1)
        for jj in range(2):
            j = 2*c+jj
            cc = "0" if ks == 0 else vr(ACC+4*j, 4)
            e("v_mfma_f32_16x16x32_bf16 %s, %s, %s, %s" % (vr(ACC+4*j, 4), vr(buf+4*jj, 4), ar(4*ks, 4), cc))
    for ks in range(14):
        raw = RAW+32*(ks % D)
        e.vmw(("wq", ks, 7))
        perms(raw, 0); perms(raw, 1); mf(ks, 0); perms(raw, 2); mf(ks, 1); perms(raw, 3); mf(ks, 2)
        if ks + D < 14: wql(ks+D)
        kd(per[ks])
        e.nop(1)
        mf(ks, 3)
    kd(R)
    e("s_and_b32 %s, %s, 1" % (sr(sT0), sr(sW)))
    e("s_lshl_b32 %s, %s, 13" % (sr(sT0), sr(sT0)))
    e("s_lshr_b32 %s, %s, 1" % (sr(sT1), sr(sW)))
    e("s_lshl_b32 %s, %s, 8" % (sr(sT1), sr(sT1)))
    e("s_add_u32 %s, %s, %s" % (sr(sT0), sr(sT0), sr(sT1)))
    e("s_add_u32 %s, %s, %d" % (sr(sT0), sr(sT0), PBASE))
    e("v_lshrrev_b32 v28, 4, v0")
    e("v_and_b32 v29, 15, v0")
    e("v_lshlrev_b32 v28, 11, v28")
    e("v_lshl_add_u32 v28, v29, 4, v28")
    e("v_add_u32 v28, %s, v28" % sr(sT0))
    e.nop(4)
    for jj in range(4):
        for k in range(4):
            e("v_cvt_pk_bf16_f32 %s, %s, %s" % (vr(TB+4*jj+k), vr(ACC+4*(2*k)+jj), vr(ACC+4*(2*k+1)+jj)))
    for jj in range(4):
        e.lgi(("qw", jj), "ds_write_b128 v28, %s offset:%d" % (vr(TB+4*jj, 4), (jj >> 1)*1024+(jj & 1)*512))
    e.lg0()
    e("s_barrier")
    for s in range(16):
        if s == 12: e.lgw(("qr", 3))
        e.lgi(("qr", s), "ds_read_b128 %s, v12 offset:%d" % (ar(64+4*s, 4), s*1024))

def kphase(e, cfg):
    S0, KF = 32, 96
    nt = cfg.get('nt', "")
    for T in range(4):
        e("v_add_u32 v26, %d, v17" % ((16*T) % R))
        e("v_cmp_le_u32 vcc, %d, v26" % R)
        e("v_subrev_u32 v27, %d, v26" % R)
        e("v_cndmask_b32 v26, v26, v27, vcc")
        e("v_lshl_add_u32 v18, v26, 10, v16")
        for j in range(1, 8):
            e("v_xor_b32 %s, %d, v18" % (vr(18+j), j << 5))
        e.vmw(("u", 16*T+15))
        def rd(s):
            e.lgi(("kr", T, s), "ds_read_b128 %s, %s offset:%d" % (vr(KF+4*(s & 7), 4), vr(18+(s & 7)), (s >> 3)*256))
        if T == 0:
            e.lg0()
        for s in range(8): rd(s)
        for s in range(16):
            e.lgw(("kr", T, s))
            cc = "0" if s == 0 else vr(S0+16*T, 16)
            e("v_mfma_f32_32x32x16_bf16 %s, %s, %s, %s" % (vr(S0+16*T, 16), vr(KF+4*(s & 7), 4), ar(64+4*s, 4), cc))
            if s+8 < 16: rd(s+8)
        for u in range(16*T+R, 16*T+R+16):
            k_dma(e, u, nt)
        if cfg.get('wo_pref') and T == 0:
            cfg['wo_pref'](e)

def softmax(e, cfg):
    S0 = 32
    pump = cfg.get('pump', lambda n: None)
    pump(2)
    e.nop(12)
    e("v_max3_f32 v26, %s, %s, %s" % (vr(S0), vr(S0+1), vr(S0+2)))
    e("v_max3_f32 v27, %s, %s, %s" % (vr(S0+3), vr(S0+4), vr(S0+5)))
    k = 6
    tog = 0
    while k < 64:
        d = 26 + tog
        if k+1 < 64:
            e("v_max3_f32 %s, %s, %s, %s" % (vr(d), vr(d), vr(S0+k), vr(S0+k+1))); k += 2
        else:
            e("v_max_f32 %s, %s, %s" % (vr(d), vr(d), vr(S0+k))); k += 1
        tog ^= 1
    e("v_max_f32 v26, v26, v27")
    e("s_lshl_b32 %s, %s, 8" % (sr(sT0), sr(sW)))
    e("s_add_u32 %s, %s, %d" % (sr(sT0), sr(sT0), MAXB))
    e("v_lshlrev_b32 v28, 2, v0")
    e("v_add_u32 v29, %s, v28" % sr(sT0))
    e.lgi("mw", "ds_write_b32 v29, v26")
    pump(1)
    e("v_and_b32 v30, 31, v0")
    e("v_lshlrev_b32 v30, 2, v30")
    e("v_add_u32 v30, %d, v30" % MAXB)
    e.lg0()
    e("s_barrier")
    for k in range(4):
        e.lgi(("mr", k), "ds_read2_b32 %s, v30 offset0:%d offset1:%d" % (vr(96+2*k, 2), 64*k, 64*k+32))
    e.lg0()
    e("v_max3_f32 v26, v96, v97, v98")
    e("v_max3_f32 v27, v99, v100, v101")
    e("v_max3_f32 v26, v26, v102, v103")
    e("v_max_f32 v26, v26, v27")
    e("s_mov_b32 %s, 0x%08x" % (sr(sSC), f2u(SCALE)))
    e("v_mul_f32 v31, %s, v26" % sr(sSC))
    PK = 96
    e("v_mov_b32 v26, 0")
    e("v_mov_b32 v27, 0")
    for T in range(4):
        for ee in range(2):
            b0 = S0+16*T+8*ee
            for k in range(8):
                e("v_fma_f32 %s, %s, %s, -v31" % (vr(b0+k), vr(b0+k), sr(sSC)))
            for k in range(8):
                e("v_exp_f32 %s, %s" % (vr(b0+k), vr(b0+k)))
            pump(1 if (T, ee) != (0, 0) else 2)
            pk = PK + 4*((2*T+ee) & 1)
            for k in range(4):
                e("v_add_f32 v26, v26, %s" % vr(b0+2*k))
                e("v_add_f32 v27, v27, %s" % vr(b0+2*k+1))
                e("v_cvt_pk_bf16_f32 %s, %s, %s" % (vr(pk+k), vr(b0+2*k), vr(b0+2*k+1)))
            if len(e.lg) >= 2: e.lgw(e.lg[-2]) if False else None
            e.lgi(("pw", T, ee), "ds_write_b128 v13, %s offset:%d" % (vr(pk, 4), (2*T+ee)*1024))
            if (T, ee) != (0, 0):
                prev = (T, 0) if ee == 1 else (T-1, 1)
                e.lgw(("pw",)+prev)
    pump(2)
    e("v_add_f32 v26, v26, v27")
    e("v_add_u32 v29, %d, v29" % (SUMB-MAXB))
    e.lgi("sw", "ds_write_b32 v29, v26")
    e("v_add_u32 v30, %d, v30" % (SUMB-MAXB))
    e.lg0()
    e("s_barrier")
    for k in range(4):
        e.lgi(("sr", k), "ds_read2_b32 %s, v30 offset0:%d offset1:%d" % (vr(96+2*k, 2), 64*k, 64*k+32))
    e.lg0()
    e("v_add_f32 v96, v96, v97")
    e("v_add_f32 v98, v98, v99")
    e("v_add_f32 v100, v100, v101")
    e("v_add_f32 v102, v102, v103")
    e("v_add_f32 v96, v96, v98")
    e("v_add_f32 v100, v100, v102")
    e("v_add_f32 v30, v96, v100")

OACC = 32
def vphase(e, cfg):
    VF, PF = 64, 80
    nt = cfg.get('nt', "")
    def reads(t):
        vb = VF + 8*(t & 1)
        pb = PF + 4*(t & 1)
        e.lgi(("pr", t), "ds_read_b128 %s, v12 offset:%d" % (vr(pb, 4), t*1024))
        for d in range(2):
            for uu in range(2):
                slot = (64+2*t+uu) % R
                e.lgi(("vr", t, d, uu), "ds_read_b64_tr_b16 %s, %s offset:%d" % (vr(vb+4*d+2*uu, 2), vr(10+d), slot*1024))
    e.vmw(("u", 65))
    reads(0)
    for t in range(32):
        if t+1 < 32:
            e.vmw(("u", 64+2*(t+1)+1))
            reads(t+1)
        e.lgw(("vr", t, 1, 1))
        vb = VF + 8*(t & 1); pb = PF + 4*(t & 1)
        for d in range(2):
            cc = "0" if t == 0 else vr(OACC+16*d, 16)
            e("v_mfma_f32_32x32x16_bf16 %s, %s, %s, %s" % (vr(OACC+16*d, 16), vr(vb+4*d, 4), vr(pb, 4), cc))
        for uu in range(2):
            u = 64+2*t+uu+R
            if u < 128: k_dma(e, u, nt)
        if cfg.get('vhook'): cfg['vhook'](e, t)

def part_store(e, cfg, sc):
    e("v_rcp_f32 v29, v30")
    e("s_lshl_b32 %s, s2, 14" % sr(sT0))
    e("s_lshl_b32 %s, %s, 12" % (sr(sT1), sr(sW)))
    e("s_add_u32 %s, %s, %s" % (sr(sT0), sr(sT0), sr(sT1)))
    e("v_lshlrev_b32 v26, 4, v0")
    e.nop(8)
    for k in range(32):
        e("v_mul_f32 %s, %s, v29" % (vr(OACC+k), vr(OACC+k)))
    for k in range(16):
        e("v_cvt_pk_bf16_f32 %s, %s, %s" % (vr(64+k), vr(OACC+2*k), vr(OACC+2*k+1)))
    for r4 in range(4):
        e.vmi(("ps", r4), "buffer_store_dwordx4 %s, v26, %s, %s offen offset:%d%s" % (vr(64+4*r4, 4), sr(rWS, 4), sr(sT0), r4*1024, sc))
    e("s_cmp_lg_u32 %s, 0" % sr(sW))
    e("s_cbranch_scc1 L_nostats%d" % cfg.get('uid', 0))
    e("s_lshl_b32 %s, s2, 8" % sr(sT0))
    e("s_add_u32 %s, %s, 0x%x" % (sr(sT0), sr(sT0), WS_STATS))
    e("v_and_b32 v27, 31, v0")
    e("v_lshlrev_b32 v27, 3, v27")
    e("v_mov_b32 v28, v31")
    e("v_mov_b32 v29, v30")
    e("buffer_store_dwordx2 v[28:29], v27, %s, %s offen%s" % (sr(rWS, 4), sr(sT0), sc))
    e.label("L_nostats%d" % cfg.get('uid', 0))

def combine(e, cfg, sc, PJ=(64, 80, 224, 240), OF=64):
    e("s_lshl_b32 %s, %s, 5" % (sr(sT0), sr(sB)))
    e("s_add_u32 %s, %s, %s" % (sr(sT0), sr(sT0), sr(sHKV)))
    e("s_lshl_b32 %s, %s, 8" % (sr(sT1), sr(sT0)))
    e("s_add_u32 %s, %s, 0x%x" % (sr(sT1), sr(sT1), WS_STATS))
    e("v_and_b32 v27, 31, v0")
    e("v_lshlrev_b32 v27, 3, v27")
    for j in range(4):
        e.vmi(("st", j), "buffer_load_dwordx2 %s, v27, %s, %s offen offset:%d%s" % (vr(18+2*j, 2), sr(rWS, 4), sr(sT1), j*2048, sc))
    e("s_lshl_b32 %s, %s, 14" % (sr(sT0), sr(sT0)))
    e("s_lshl_b32 %s, %s, 12" % (sr(sT1), sr(sW)))
    e("s_add_u32 %s, %s, %s" % (sr(sT0), sr(sT0), sr(sT1)))
    e("v_lshlrev_b32 v26, 4, v0")
    for j in range(4):
        for r4 in range(4):
            e.vmi(("pl", j, r4), "buffer_load_dwordx4 %s, v26, %s, %s offen offset:%d%s" % (vr(PJ[j]+4*r4, 4), sr(rWS, 4), sr(sT0), r4*1024, sc))
        if j < 3: e("s_add_u32 %s, %s, %d" % (sr(sT0), sr(sT0), 8*16384))
    e.vmw(("st", 3))
    e("v_max3_f32 v28, v18, v20, v22")
    e("v_max_f32 v28, v28, v24")
    for j in range(4):
        e("v_sub_f32 %s, %s, v28" % (vr(18+2*j), vr(18+2*j)))
    for j in range(4):
        e("v_exp_f32 %s, %s" % (vr(18+2*j), vr(18+2*j)))
    e.nop(1)
    for j in range(4):
        e("v_mul_f32 %s, %s, %s" % (vr(18+2*j), vr(18+2*j), vr(19+2*j)))
    e("v_add_f32 v28, v18, v20")
    e("v_add_f32 v29, v22, v24")
    e("v_add_f32 v28, v28, v29")
    e("v_rcp_f32 v28, v28")
    e.nop(1)
    for j in range(4):
        e("v_mul_f32 %s, %s, v28" % (vr(18+2*j), vr(18+2*j)))
    e("s_mov_b32 %s, 0xffff0000" % sr(sT2))
    for j in range(4):
        e.vmw(("pl", j, 3))
        wj = vr(18+2*j)
        for k in range(16):
            src = vr(PJ[j]+k)
            e("v_lshlrev_b32 v28, 16, %s" % src)
            e("v_and_b32 v29, %s, %s" % (sr(sT2), src))
            if j == 0:
                e("v_mul_f32 %s, v28, %s" % (vr(32+2*k), wj))
                e("v_mul_f32 %s, v29, %s" % (vr(32+2*k+1), wj))
            else:
                e("v_fmac_f32 %s, v28, %s" % (vr(32+2*k), wj))
                e("v_fmac_f32 %s, v29, %s" % (vr(32+2*k+1), wj))
    for k in range(16):
        e("v_cvt_pk_bf16_f32 %s, %s, %s" % (vr(OF+k), vr(32+2*k), vr(32+2*k+1)))

HEAD = """.amdgcn_target "amdgcn-amd-amdhsa--gfx950"
.text
"""
def kernel_text(name, body):
    return ".globl %s\n.p2align 8\n.type %s,@function\n%s:\n%s\n" % (name, name, name, body)
def kd_text(name, nv, acc):
    return """.amdhsa_kernel %s
  .amdhsa_next_free_vgpr %d
  .amdhsa_next_free_sgpr 102
  .amdhsa_accum_offset %d
  .amdhsa_group_segment_fixed_size 0
  .amdhsa_kernarg_size 64
  .amdhsa_user_sgpr_count 2
  .amdhsa_user_sgpr_kernarg_segment_ptr 1
  .amdhsa_system_sgpr_workgroup_id_x 1
.end_amdhsa_kernel
""" % (name, nv, acc)

HDR = open("standalone__gqa_block_cached__sampling.s.ref").read().split("; Override launch")[0]


WOF = (96, 128, 160, 192)
RAWO = 128
def wo_transposes(e, ks):
    e.vmw(("wo", ks, 7))
    transpose8(e, RAWO+32*ks, WOF[ks])

def build_v1(cfg):
    name = "standalone__gqa_block_cached__sampling_kernel"
    e = Em(); c = dict(cfg); c['exit'] = "L_exitA"; c['uid'] = 0
    ts(e, c, 0)
    common_prologue(e, 256, c)
    attn_setup(e, c)
    e("s_waitcnt lgkmcnt(0)")
    attn_srds(e)
    ts(e, c, 1)
    qproj(e, c)
    ts(e, c, 2)
    kphase(e, c)
    ts(e, c, 3)
    softmax(e, c)
    ts(e, c, 4)
    vphase(e, c)
    ts(e, c, 5)
    part_store(e, c, "")
    e.vm0()
    ts(e, c, 6)
    ts_store(e, c, 7)
    e.label("L_exitA")
    e("s_endpgm")
    ka = e.text()
    e = Em(); c = dict(cfg); c['exit'] = "L_exitB"; c['uid'] = 1; c['ts'] = False
    common_prologue(e, 256, c)
    wo_vaddr(e, 17, 28, 29)
    e("s_waitcnt lgkmcnt(0)")
    srd(e, rWS, sWS, None, 1 << 28)
    wo_srd(e)
    for ks in range(4):
        for s in range(8):
            wo_load(e, ks, s, RAWO+32*ks+4*s, 17)
    combine(e, c, "", PJ=(64, 80, 96, 112))
    for ks in range(4): wo_transposes(e, ks)
    e.nop(2)
    outproj_tail(e, c, 64, WOF, 32, 0, "")
    e.vm0()
    e.label("L_exitB")
    e("s_endpgm")
    kb = e.text()
    e = Em(); c = dict(cfg); c['exit'] = "L_exitC"; c['uid'] = 2; c['ts'] = False
    common_prologue(e, 256, c)
    e("s_waitcnt lgkmcnt(0)")
    srd(e, rWS, sWS, None, 1 << 28)
    srd(e, rOUT, sOUT, None, 8*16*448*2)
    final_reduce(e, c, "")
    e.vm0()
    e.label("L_exitC")
    e("s_endpgm")
    kc = e.text()
    txt = HDR
    txt += "; @launch kernel=%s grid=(256,1,1) block=(256,1,1) lds=%d\n" % (name, LDS_A)
    txt += "; @launch kernel=gqa_b_kernel grid=(256,1,1) block=(256,1,1) lds=32768\n"
    txt += "; @launch kernel=gqa_c_kernel grid=(256,1,1) block=(64,1,1) lds=0\n"
    txt += HEAD + kernel_text(name, ka) + kernel_text("gqa_b_kernel", kb) + kernel_text("gqa_c_kernel", kc)
    txt += '.section .rodata,"a"\n.p2align 6\n' + kd_text(name, 512, 256) + ".p2align 6\n" + kd_text("gqa_b_kernel", 256, 256) + ".p2align 6\n" + kd_text("gqa_c_kernel", 72, 72)
    return txt

if __name__ == "__main__":
    import json
    cfg = json.loads(sys.argv[2]) if len(sys.argv) > 2 else {}
    open(sys.argv[1], "w").write(globals()["build_" + cfg.get("ver", "v1")](cfg))
```

```python
from gen2 import *

WS_E1 = 0
WS_E0 = 6 << 20
WS_E2 = 10 << 20
WS_EP = 16 << 20
C1, C2 = 0x9E3779B9, 0x7F4A7C15
sTA, sTB, sM2 = 58, 59, 63
SC = " sc1"
def tsn(e, cfg, name):
    L = cfg.get('tsn')
    if L and name in L:
        e("s_memrealtime %s" % sr(sTS + 2*L.index(name), 2))

def q_issue(e, cfg, kd):
    RAW = 128
    e("s_lshl_b32 %s, s2, 2" % sr(sT0))
    e("s_add_u32 %s, %s, %s" % (sr(sT0), sr(sT0), sr(sW)))
    e("s_mul_i32 %s, %s, 5120" % (sr(sT0), sr(sT0)))
    if WS_E1: e("s_add_u32 %s, %s, 0x%x" % (sr(sT0), sr(sT0), WS_E1))
    e("s_mov_b32 s92, %s" % sr(sT0))
    for k in range(4): e("v_mov_b32 %s, -1" % vr(96+k))
    e("v_lshlrev_b32 v26, 4, v0")
    def clears():
        for k in range(5):
            e("s_add_u32 %s, s92, %d" % (sr(sT0), k*1024))
            e.vmi(("clr", k), "buffer_store_dwordx4 v[96:99], v26, %s, %s offen%s" % (sr(rWS, 4), sr(sT0), SC))
    if cfg.get('pref', 1):
        e("s_lshl_b32 %s, %s, 2" % (sr(sT0), sr(sB)))
        e("s_add_u32 %s, %s, %s" % (sr(sT0), sr(sT0), sr(sSP)))
        e("s_lshl_b32 %s, %s, 2" % (sr(sT0), sr(sT0)))
        e("s_add_u32 %s, %s, %s" % (sr(sT0), sr(sT0), sr(sW)))
        e("s_mul_i32 %s, %s, 28" % (sr(sT0), sr(sT0)))
        e("v_min_u32 v28, 27, v0")
        e("v_add_u32 v28, %s, v28" % sr(sT0))
        e("v_lshrrev_b32 v29, 3, v28")
        e("v_lshlrev_b32 v29, 13, v29")
        e("v_and_b32 v30, 7, v28")
        e("v_lshl_add_u32 v29, v30, 7, v29")
        e("s_lshl_b32 %s, %s, 10" % (sr(sT1), sr(sHKV)))
        e("v_add_u32 v29, %s, v29" % sr(sT1))
        e("v_lshlrev_b32 v28, 7, v28")
        e("s_mul_i32 %s, %s, %d" % (sr(sT1), sr(sHKV), 512*896))
        e("v_add_u32 v28, %s, v28" % sr(sT1))
        e.vmi(("pf", 0), "global_load_dword v30, v29, %s" % sr(sWQ, 2))
        e.vmi(("pf", 1), "global_load_dword v31, v28, %s" % sr(sWO, 2))
    kd(cfg.get('k0', 8))
    for t in range(4):
        e("s_lshl_b32 %s, %s, 6" % (sr(sT0), sr(sW)))
        if t: e("s_add_u32 %s, %s, %d" % (sr(sT0), sr(sT0), t*256))
        if t == 3:
            e("s_cmp_ge_u32 %s, 2" % sr(sW))
            e("s_cselect_b32 %s, 0x40000000, %s" % (sr(sT0), sr(sT0)))
        e.vmi(("x", t), "buffer_load_dwordx4 %s, v15, %s, %s offen" % (ar(4*t, 4), sr(rX, 4), sr(sT0)))
    tsn(e, cfg, 'ix')
    for t in range(4):
        for r in range(8):
            e("s_mov_b32 %s, %d" % (sr(sOFF), (128*t+r)*8192))
            e.vmi(("wq", t, r), "buffer_load_dwordx4 %s, v14, %s, %s offen" % (vr(RAW+32*t+4*r, 4), sr(rWQ, 4), sr(sOFF)))
        tsn(e, cfg, 'iq%d' % t)
    clears()

def q_compute(e, cfg, kd):
    RAW, ACC, TB = 128, 32, 64
    def perms(raw, c):
        buf = TB + 8*(c & 1)
        for jj in range(2):
            j = 2*c+jj
            for p in range(4):
                sel = sPHI if (j & 1) else sPLO
                e("v_perm_b32 %s, %s, %s, %s" % (vr(buf+4*jj+p), vr(raw+4*(2*p+1)+c), vr(raw+4*(2*p)+c), sr(sel)))
    def mf(t, c):
        buf = TB + 8*(c & 1)
        for jj in range(2):
            j = 2*c+jj
            cc = "0" if t == 0 else vr(ACC+4*j, 4)
            e("v_mfma_f32_16x16x32_bf16 %s, %s, %s, %s" % (vr(ACC+4*j, 4), vr(buf+4*jj, 4), ar(4*t, 4), cc))
    left = cfg.get('kmid', 0)
    for t in range(4):
        raw = RAW+32*t
        e.vmw(("wq", t, 7))
        tsn(e, cfg, 'wq%d' % t)
        perms(raw, 0); kd(1); perms(raw, 1); mf(t, 0); kd(1); perms(raw, 2); mf(t, 1); kd(1); perms(raw, 3); mf(t, 2)
        kd(1)
        mf(t, 3)
    e("s_lshl_b32 %s, %s, 13" % (sr(sT0), sr(sW)))
    e("s_add_u32 %s, %s, %d" % (sr(sT0), sr(sT0), PBASE))
    e("v_add_u32 v27, %s, v26" % sr(sT0))
    e.nop(6)
    for j in range(8):
        e.lgi(("qw", j), "ds_write_b128 v27, %s offset:%d" % (vr(ACC+4*j, 4), j*1024))
    kd(2)
    tsn(e, cfg, 'qmf')
    e.vmw(("clr", 4))
    tsn(e, cfg, 'clr')
    e.lg0()
    e("s_barrier")
    tsn(e, cfg, 'qbar')
    e("s_lshl_b32 %s, %s, 11" % (sr(sT0), sr(sW)))
    e("s_add_u32 %s, %s, %d" % (sr(sT0), sr(sT0), PBASE))
    e("v_add_u32 v27, %s, v26" % sr(sT0))
    for jj in range(2):
        for w in range(4):
            e.lgi(("qr", jj, w), "ds_read_b128 %s, v27 offset:%d" % (vr(ACC+16*jj+4*w, 4), w*8192+jj*1024))
    kd(2)
    for jj in range(2):
        e.lgw(("qr", jj, 3))
        b0 = ACC+16*jj
        for k in range(4):
            e("v_add_f32 %s, %s, %s" % (vr(b0+k), vr(b0+k), vr(b0+4+k)))
            e("v_add_f32 %s, %s, %s" % (vr(b0+8+k), vr(b0+8+k), vr(b0+12+k)))
        for k in range(4):
            e("v_add_f32 %s, %s, %s" % (vr(b0+k), vr(b0+k), vr(b0+8+k)))
    e("s_barrier")
    for r in range(4):
        e("v_cvt_pk_bf16_f32 %s, %s, %s" % (vr(64+2*r), vr(ACC+r), vr(ACC+16+r)))
    for g in range(2):
        e("v_mov_b32 %s, %s" % (vr(64+4*g+1), sr(sTA)))
        e("v_mov_b32 %s, %s" % (vr(64+4*g+3), sr(sTB)))
    e("s_lshl_b32 %s, s2, 2" % sr(sT0))
    e("s_add_u32 %s, %s, %s" % (sr(sT0), sr(sT0), sr(sW)))
    e("s_lshl_b32 %s, %s, 11" % (sr(sT0), sr(sT0)))
    e("s_add_u32 %s, %s, 0x%x" % (sr(sT0), sr(sT0), WS_E0))
    for g in range(2):
        e.vmi(("e0s", g), "buffer_store_dwordx4 %s, v26, %s, %s offen offset:%d%s" % (vr(64+4*g, 4), sr(rWS, 4), sr(sT0), g*1024, SC))

def e0_loads(e, tagit=True):
    e("s_lshl_b32 %s, %s, 5" % (sr(sT0), sr(sB)))
    e("s_add_u32 %s, %s, %s" % (sr(sT0), sr(sT0), sr(sHKV)))
    e("s_lshl_b32 %s, %s, 2" % (sr(sT0), sr(sT0)))
    e("s_add_u32 %s, %s, %s" % (sr(sT0), sr(sT0), sr(sW)))
    e("s_lshl_b32 %s, %s, 11" % (sr(sT0), sr(sT0)))
    e("s_add_u32 %s, %s, 0x%x" % (sr(sT0), sr(sT0), WS_E0))
    e("v_lshlrev_b32 v26, 4, v0")
    for p in range(4):
        for g in range(2):
            e.vmi(("e0l", p, g), "buffer_load_dwordx4 %s, v26, %s, %s offen offset:%d%s" % (vr(96+8*p+4*g, 4), sr(rWS, 4), sr(sT0), g*1024, SC))
        if p < 3: e("s_add_u32 %s, %s, %d" % (sr(sT0), sr(sT0), 8*4*2048))

def tagcheck(e, regs):
    first = True
    for r in regs:
        e("v_xor_b32 v28, %s, %s" % (sr(sTA), vr(r+1)))
        e("v_xor_b32 v29, %s, %s" % (sr(sTB), vr(r+3)))
        if first: e("v_or_b32 v27, v28, v29"); first = False
        else: e("v_or3_b32 v27, v27, v28, v29")
    e("v_cmp_ne_u32 vcc, 0, v27")

def e0_finish(e, cfg):
    e.vmw(("e0l", 3, 1))
    keep = list(e.vm)
    regs = [96+8*p+4*g for p in range(4) for g in range(2)]
    tagcheck(e, regs)
    e.nop(4)
    e("s_cbranch_vccz L_e0_ok")
    e.label("L_e0_retry")
    e("s_add_u32 s94, s94, 1")
    e("s_cmp_ge_u32 s94, 0x40000")
    e("s_cbranch_scc1 L_exitA")
    sv = e.vm; e.vm = []
    e0_loads(e)
    e.vm0()
    tagcheck(e, regs)
    e.nop(4)
    e("s_cbranch_vccnz L_e0_retry")
    e.label("L_e0_ok")
    e.vm = keep
    e("v_lshrrev_b32 v28, 4, v0")
    e("v_and_b32 v29, 15, v0")
    e("v_lshlrev_b32 v28, 11, v28")
    e("v_lshl_add_u32 v28, v29, 4, v28")
    e("s_lshl_b32 %s, %s, 2" % (sr(sT0), sr(sW)))
    e("s_add_u32 %s, %s, %d" % (sr(sT0), sr(sT0), PBASE))
    e("v_add_u32 v28, %s, v28" % sr(sT0))
    for p in range(4):
        for r in range(4):
            off = (p & 1)*8192 + (r >> 1)*1024 + (r & 1)*512 + (p >> 1)*256
            e.lgi(("qs", p, r), "ds_write_b32 v28, %s offset:%d" % (vr(96+8*p+2*r), off))
            if len(e.lg) >= 12: e.lgw(e.lg[3])
    e.lg0()
    e("s_barrier")
    for s in range(16):
        if s == 12: e.lgw(("qf", 3))
        e.lgi(("qf", s), "ds_read_b128 %s, v12 offset:%d" % (ar(64+4*s, 4), s*1024))

def k_addr(e, T):
    e("v_add_u32 v26, %d, v17" % ((16*T) % R))
    e("v_cmp_le_u32 vcc, %d, v26" % R)
    e("v_subrev_u32 v27, %d, v26" % R)
    e.nop(1)
    e("v_cndmask_b32 v26, v26, v27, vcc")
    e("v_lshl_add_u32 v18, v26, 10, v16")
    for j in range(1, 8):
        e("v_xor_b32 %s, %d, v18" % (vr(18+j), j << 5))

def kphase2(e, cfg):
    S0, KF = 32, 96
    nt = cfg.get('nt', "")
    wo_sched = cfg['wo_sched']
    def refill(T, shadow=None):
        wl = wo_sched.get(('K', T), [])
        n = len(wl); done = 0
        for i, u in enumerate(range(16*T+R, 16*T+R+16)):
            k_dma(e, u, nt)
            if shadow: shadow(i)
            tgt = ((i+1)*n)//16
            while done < tgt:
                ks, s = wl[done]; wo_load(e, ks, s, RAWO+32*ks+4*s, 14); done += 1
            if T == cfg.get('e0T', 0) and i == cfg.get('e0i', 15): e0_loads(e)
    for T in range(2):
        k_addr(e, T)
        e.vmw(("u", 16*T+15))
        for s in range(16):
            if s == 12: e.lgw(("ka", T, 3))
            e.lgi(("ka", T, s), "ds_read_b128 %s, %s offset:%d" % (ar(128+64*T+4*s, 4), vr(18+(s & 7)), (s >> 3)*256))
        e.lg0()
        if T == 0: wo_vaddr(e, 14, 28, 29)
        refill(T)
        tsn(e, cfg, 't%d' % T)
    e0_finish(e, cfg)
    tsn(e, cfg, 'e0')
    k_addr(e, 2)
    e.lg0()
    def tile_lds(T):
        e.vmw(("u", 16*T+15))
        def rd(s):
            e.lgi(("kr", T, s), "ds_read_b128 %s, %s offset:%d" % (vr(KF+4*(s & 7), 4), vr(18+(s & 7)), (s >> 3)*256))
        for s in range(8): rd(s)
        for s in range(16):
            e.lgw(("kr", T, s))
            cc = "0" if s == 0 else vr(S0+16*T, 16)
            e("v_mfma_f32_32x32x16_bf16 %s, %s, %s, %s" % (vr(S0+16*T, 16), vr(KF+4*(s & 7), 4), ar(64+4*s, 4), cc))
            if s+8 < 16: rd(s+8)
    tile_lds(2)
    deferred = [(T, s) for T in range(2) for s in range(16)]
    def shadow(i):
        for T, s in deferred[2*i:2*i+2]:
            cc = "0" if s == 0 else vr(S0+16*T, 16)
            e("v_mfma_f32_32x32x16_bf16 %s, %s, %s, %s" % (vr(S0+16*T, 16), ar(128+64*T+4*s, 4), ar(64+4*s, 4), cc))
    refill(2, shadow)
    k_addr(e, 3)
    tile_lds(3)
    tsn(e, cfg, 'k3')
    pend = list(range(48+R, 48+R+16))
    wl = list(wo_sched.get(('K', 3), []))
    cnt = [0]
    def pump(n):
        for _ in range(n):
            if pend:
                k_dma(e, pend.pop(0), nt); cnt[0] += 1
                if wl and cnt[0] % 2 == 0:
                    ks, s_ = wl.pop(0); wo_load(e, ks, s_, RAWO+32*ks+4*s_, 14)
        if not pend:
            while wl:
                ks, s_ = wl.pop(0); wo_load(e, ks, s_, RAWO+32*ks+4*s_, 14)
    cfg['pump'] = pump

def mk_vhook(cfg):
    sched = cfg['wo_sched']; t0 = cfg.get('tr0', 0); per = cfg.get('trper', 1)
    def vhook(e, t):
        for ks, s_ in sched.get(('V', t), []):
            wo_load(e, ks, s_, RAWO+32*ks+4*s_, 14)
        for c in range(per):
            idx = (t-t0)*per + c
            if t >= t0 and idx < 32:
                ks, j = idx >> 3, idx & 7
                if j == 0: e.vmw(("wo", ks, 7))
                transpose8(e, RAWO+32*ks, WOF[ks], cols=[j])
    return vhook
def mk_wo_sched(cfg):
    allw = [(ks, s_) for ks in range(4) for s_ in range(8)]
    plan = cfg.get('woplan', [["K",0,8],["K",1,8],["K",2,8],["K",3,8]])
    sched = {}; i = 0
    for kind, idx, n in plan:
        sched[(kind, idx)] = allw[i:i+n]; i += n
    assert i == 32
    return sched

E1R = (64, 80, 224)
E1S = (240, 244, 248)
def e1_loads(e):
    for k in range(1, 4):
        e("s_add_u32 %s, %s, %d" % (sr(sT0), sr(sSP), k))
        e("s_and_b32 %s, %s, 3" % (sr(sT0), sr(sT0)))
        e("s_lshl_b32 %s, %s, 2" % (sr(sT1), sr(sB)))
        e("s_add_u32 %s, %s, %s" % (sr(sT0), sr(sT0), sr(sT1)))
        e("s_lshl_b32 %s, %s, 3" % (sr(sT0), sr(sT0)))
        e("s_add_u32 %s, %s, %s" % (sr(sT0), sr(sT0), sr(sHKV)))
        e("s_lshl_b32 %s, %s, 2" % (sr(sT0), sr(sT0)))
        e("s_add_u32 %s, %s, %s" % (sr(sT0), sr(sT0), sr(sW)))
        e("s_mul_i32 %s, %s, 5120" % (sr(sT0), sr(sT0)))
        if WS_E1: e("s_add_u32 %s, %s, 0x%x" % (sr(sT0), sr(sT0), WS_E1))
        for r4 in range(4):
            e.vmi(("e1l", k, r4), "buffer_load_dwordx4 %s, v26, %s, %s offen offset:%d%s" % (vr(E1R[k-1]+4*r4, 4), sr(rWS, 4), sr(sT0), r4*1024, SC))
        e("s_add_u32 %s, %s, 4096" % (sr(sT0), sr(sT0)))
        e.vmi(("e1l", k, 4), "buffer_load_dwordx4 %s, v26, %s, %s offen%s" % (vr(E1S[k-1], 4), sr(rWS, 4), sr(sT0), SC))

def e1_check(e):
    regs = [b+i for b in E1R for i in range(16)] + [b+i for b in E1S for i in range(4)]
    e("v_max3_u32 v27, %s, %s, %s" % (vr(regs[0]), vr(regs[1]), vr(regs[2])))
    e("v_max3_u32 v28, %s, %s, %s" % (vr(regs[3]), vr(regs[4]), vr(regs[5])))
    i = 6; tog = 0
    while i < len(regs):
        d = 27+tog
        e("v_max3_u32 %s, %s, %s, %s" % (vr(d), vr(d), vr(regs[i]), vr(regs[i+1]))); i += 2; tog ^= 1
    e("v_max_u32 v27, v27, v28")
    e("v_cmp_eq_u32 vcc, -1, v27")

def tail(e, cfg):
    PK = 80
    PK = 224
    e("v_lshlrev_b32 v26, 4, v0")
    e("s_mov_b32 %s, 0xfffffffe" % sr(sM2))
    e.nop(10)
    for k in range(16):
        e("v_cvt_pk_bf16_f32 %s, %s, %s" % (vr(PK+k), vr(OACC+2*k), vr(OACC+2*k+1)))
    for k in range(16):
        e("v_min_u32 %s, %s, %s" % (vr(PK+k), sr(sM2), vr(PK+k)))
    e("v_min_u32 v240, %s, v31" % sr(sM2))
    e("v_min_u32 v241, %s, v30" % sr(sM2))
    e("v_mov_b32 v242, v240")
    e("v_mov_b32 v243, v241")
    for r4 in range(4):
        e.vmi(("e1s", r4), "buffer_store_dwordx4 %s, v26, %s, s92 offen offset:%d%s" % (vr(PK+4*r4, 4), sr(rWS, 4), r4*1024, SC))
    e("s_add_u32 %s, s92, 4096" % sr(sT0))
    e.vmi(("e1s", 4), "buffer_store_dwordx4 v[240:243], v26, %s, %s offen%s" % (sr(rWS, 4), sr(sT0), SC))
    tsn(e, cfg, 'e1s')
    e("s_nop 1")
    e.label("L_e1_retry")
    e("s_add_u32 s94, s94, 1")
    e("s_cmp_ge_u32 s94, 0x40000")
    e("s_cbranch_scc1 L_exitA")
    e1_loads(e)
    e.vm0()
    e1_check(e)
    e.nop(4)
    e("s_cbranch_vccnz L_e1_retry")
    tsn(e, cfg, 'e1')
    m = [31] + [b for b in E1S]; l = [30] + [b+1 for b in E1S]
    e("v_max3_f32 v28, %s, %s, %s" % (vr(m[0]), vr(m[1]), vr(m[2])))
    e("v_max_f32 v28, v28, %s" % vr(m[3]))
    W = [18, 19, 20, 21]
    for j in range(4): e("v_sub_f32 %s, %s, v28" % (vr(W[j]), vr(m[j])))
    for j in range(4): e("v_exp_f32 %s, %s" % (vr(W[j]), vr(W[j])))
    e.nop(1)
    e("v_mul_f32 v28, %s, %s" % (vr(W[0]), vr(l[0])))
    for j in range(1, 4): e("v_fmac_f32 v28, %s, %s" % (vr(W[j]), vr(l[j])))
    e("v_rcp_f32 v28, v28")
    e.nop(1)
    for j in range(4): e("v_mul_f32 %s, %s, v28" % (vr(W[j]), vr(W[j])))
    e("s_mov_b32 %s, 0xffff0000" % sr(sT2))
    for k in range(32): e("v_mul_f32 %s, %s, %s" % (vr(OACC+k), vr(OACC+k), vr(W[0])))
    for j in range(1, 4):
        for k in range(16):
            src = vr(E1R[j-1]+k)
            d = 28 + 2*(k & 0)
            e("v_lshlrev_b32 v28, 16, %s" % src)
            e("v_and_b32 v29, %s, %s" % (sr(sT2), src))
            e("v_fmac_f32 %s, v28, %s" % (vr(OACC+2*k), vr(W[j])))
            e("v_fmac_f32 %s, v29, %s" % (vr(OACC+2*k+1), vr(W[j])))
    OF = 64
    for k in range(16):
        e("v_cvt_pk_bf16_f32 %s, %s, %s" % (vr(OF+k), vr(OACC+2*k), vr(OACC+2*k+1)))
    e.nop(2)
    ACC = 32
    for ks in range(4):
        for j in range(8):
            c = "0" if ks == 0 else vr(ACC+4*j, 4)
            e("v_mfma_f32_16x16x32_bf16 %s, %s, %s, %s" % (vr(ACC+4*j, 4), vr(WOF[ks]+4*j, 4), vr(OF+4*ks, 4), c))
    e("v_add_u32 v27, %s, v26" % sr(sRING))
    e("v_bfe_u32 v28, v0, 1, 3")
    e("v_lshlrev_b32 v28, 14, v28")
    e("v_lshrrev_b32 v29, 4, v0")
    e("v_lshl_add_u32 v28, v29, 5, v28")
    e("v_and_b32 v29, 1, v0")
    e("v_lshl_add_u32 v25, v29, 4, v28")
    e.nop(2)
    for j in range(8):
        e.lgi(("opw", j), "ds_write_b128 v27, %s offset:%d" % (vr(ACC+4*j, 4), j*1024))
    e.lg0()
    e("s_barrier")
    e("s_lshl_b32 %s, %s, 11" % (sr(sT0), sr(sW)))
    e("v_add_u32 v27, %s, v26" % sr(sT0))
    T = ACC
    for jj in range(2):
        for w in range(3):
            e.lgi(("opr", jj, w), "ds_read_b128 %s, v27 offset:%d" % (vr(T+16*jj+4*w, 4), jj*1024 + w*RING))
    e("v_add_u32 v28, %d, v27" % (3*RING))
    for jj in range(2):
        e.lgi(("opr3", jj), "ds_read_b128 %s, v28 offset:%d" % (vr(T+16*jj+12, 4), jj*1024))
    e("s_lshl_b32 %s, %s, 2" % (sr(sT0), sr(sB)))
    e("s_add_u32 %s, %s, %s" % (sr(sT0), sr(sT0), sr(sSP)))
    e("s_lshl_b32 %s, %s, 17" % (sr(sT0), sr(sT0)))
    e("s_add_u32 %s, %s, 0x%x" % (sr(sT0), sr(sT0), WS_E2))
    e("s_lshl_b32 %s, %s, 12" % (sr(sT1), sr(sW)))
    e("s_add_u32 %s, %s, %s" % (sr(sT0), sr(sT0), sr(sT1)))
    e("s_lshl_b32 %s, %s, 7" % (sr(sT1), sr(sHKV)))
    e("s_add_u32 %s, %s, %s" % (sr(sT1), sr(sT1), sr(sT0)))
    e("s_lshl_b32 %s, %s, 14" % (sr(sT2), sr(sHKV)))
    e("s_add_u32 s93, %s, %s" % (sr(sT2), sr(sT0)))
    e.lg0()
    G = 64
    for jj in range(2):
        b0 = T+16*jj
        for k in range(4):
            e("v_add_f32 %s, %s, %s" % (vr(b0+k), vr(b0+k), vr(b0+4+k)))
            e("v_add_f32 %s, %s, %s" % (vr(b0+8+k), vr(b0+8+k), vr(b0+12+k)))
        for r in range(4):
            g = G + 4*(2*jj+(r >> 1)) + 2*(r & 1)
            e("v_add_f32 %s, %s, %s" % (vr(g), vr(b0+r), vr(b0+8+r)))
    for t in range(4):
        e("v_mov_b32 %s, %s" % (vr(G+4*t+1), sr(sTA)))
        e("v_mov_b32 %s, %s" % (vr(G+4*t+3), sr(sTB)))
    for t in range(4):
        e.vmi(("e2s", t), "buffer_store_dwordx4 %s, v25, %s, %s offen offset:%d%s" % (vr(G+4*t, 4), sr(rWS, 4), sr(sT1), t*1024, SC))
    tsn(e, cfg, 'e2s')
    e("v_and_b32 v28, 1, v0")
    e("s_lshl_b32 %s, %s, 1" % (sr(sT2), sr(sHKV)))
    e("v_add_u32 v28, %s, v28" % sr(sT2))
    e("v_mul_u32_u24 v28, 896, v28")
    e("v_bfe_u32 v29, v0, 1, 2")
    e("v_lshl_add_u32 v28, v29, 6, v28")
    e("v_bfe_u32 v30, v0, 5, 1")
    e("v_bfe_u32 v31, v0, 4, 1")
    e("v_lshl_add_u32 v30, v30, 1, v31")
    e("v_lshl_add_u32 v28, v30, 4, v28")
    e("s_mul_i32 %s, %s, 14336" % (sr(sT2), sr(sB)))
    e("s_mul_i32 %s, %s, 224" % (sr(sT3), sr(sSP)))
    e("s_add_u32 %s, %s, %s" % (sr(sT2), sr(sT2), sr(sT3)))
    e("s_lshl_b32 %s, %s, 2" % (sr(sT3), sr(sW)))
    e("s_add_u32 %s, %s, %s" % (sr(sT2), sr(sT2), sr(sT3)))
    e("v_add_u32 v24, %s, v28" % sr(sT2))
    e("v_lshl_add_u32 v29, v29, 2, v30")
    e("v_bfe_u32 v31, v0, 3, 1")
    e("v_lshl_add_u32 v29, v31, 4, v29")
    e("v_mov_b32 v31, 0x40000000")
    e("v_cmp_le_u32 vcc, 14, v29")
    e.nop(2)
    e("v_cndmask_b32 v24, v24, v31, vcc")
    F = 80
    e.label("L_e2_retry")
    e("s_add_u32 s94, s94, 1")
    e("s_cmp_ge_u32 s94, 0x40000")
    e("s_cbranch_scc1 L_exitA")
    for t in range(4):
        e.vmi(("e2l", t), "buffer_load_dwordx4 %s, v26, %s, s93 offen offset:%d%s" % (vr(F+4*t, 4), sr(rWS, 4), t*1024, SC))
    e.vm0()
    tagcheck(e, [F+4*t for t in range(4)])
    e.nop(4)
    e("s_cbranch_vccnz L_e2_retry")
    tsn(e, cfg, 'e2')
    V = lambda jj, r: F + 4*(2*jj+(r >> 1)) + 2*(r & 1)
    for jj in range(2):
        for r in range(2):
            e("v_permlane32_swap_b32 %s, %s" % (vr(V(jj, r)), vr(V(jj, r+2))))
    e.nop(2)
    for jj in range(2):
        for r in range(2):
            e("v_add_f32 %s, %s, %s" % (vr(V(jj, r)), vr(V(jj, r)), vr(V(jj, r+2))))
    e.nop(2)
    for jj in range(2):
        e("v_permlane16_swap_b32 %s, %s" % (vr(V(jj, 0)), vr(V(jj, 1))))
    e.nop(2)
    for jj in range(2):
        e("v_add_f32 %s, %s, %s" % (vr(V(jj, 0)), vr(V(jj, 0)), vr(V(jj, 1))))
    e.nop(2)
    for jj in range(2):
        e("v_add_f32_dpp %s, %s, %s row_ror:8 row_mask:0xf bank_mask:0xf" % (vr(V(jj, 1)), vr(V(jj, 0)), vr(V(jj, 0))))
    e.nop(2)
    e("v_cvt_pk_bf16_f32 v30, %s, %s" % (vr(V(0, 1)), vr(V(1, 1))))
    e("buffer_store_dword v30, v24, %s, 0 offen" % sr(rOUT, 4))
    e("s_and_b32 %s, s2, 31" % sr(sT0))
    e("s_or_b32 %s, %s, %s" % (sr(sT0), sr(sT0), sr(sW)))
    e("s_cmp_lg_u32 %s, 0" % sr(sT0))
    e("s_cbranch_scc1 L_nobump")
    e("v_mov_b32 v30, %s" % sr(sTA))
    e("v_mov_b32 v31, 0")
    e("s_lshl_b32 %s, %s, 8" % (sr(sT0), sr(sB)))
    e("s_add_u32 %s, %s, 0x%x" % (sr(sT0), sr(sT0), WS_EP))
    e("s_mov_b64 exec, 1")
    e("buffer_store_dword v30, v31, %s, %s offen%s" % (sr(rWS, 4), sr(sT0), SC))
    e.label("L_nobump")

def build_v2(cfg):
    name = "standalone__gqa_block_cached__sampling_kernel"
    e = Em(); c = dict(cfg); c['exit'] = "L_exitA"; c['uid'] = 0
    tsn(e, c, 'start')
    common_prologue(e, 256, c)
    e("s_mov_b32 s94, 0")
    attn_setup(e, c)
    e("v_lshrrev_b32 v28, 4, v0")
    e("v_and_b32 v29, 15, v0")
    e("v_lshlrev_b32 v30, 16, v28")
    e("v_lshl_add_u32 v30, v29, 4, v30")
    e("s_lshl_b32 %s, %s, 18" % (sr(sT0), sr(sW)))
    e("v_add_u32 v14, %s, v30" % sr(sT0))
    e("s_lshl_b32 %s, %s, 8" % (sr(sT3), sr(sB)))
    e("s_add_u32 %s, %s, 0x%x" % (sr(sT3), sr(sT3), WS_EP))
    e("s_waitcnt lgkmcnt(0)")
    e("s_load_dword %s, %s, %s" % (sr(sM2), sr(sWS, 2), sr(sT3)))
    attn_srds(e)
    e("s_lshl_b32 %s, %s, 10" % (sr(sT0), sr(sHKV)))
    e("s_lshl_b32 %s, %s, 8" % (sr(sT1), sr(sSP)))
    e("s_add_u32 %s, %s, %s" % (sr(sT0), sr(sT0), sr(sT1)))
    e("s_add_u32 %s, %s, %s" % (sr(rWQ), sr(sWQ), sr(sT0)))
    e("s_addc_u32 %s, %s, 0" % (sr(rWQ+1), sr(sWQ+1)))
    e("s_sub_u32 %s, %d, %s" % (sr(rWQ+2), 448*8192, sr(sT0)))
    wo_srd(e)
    tsn(e, c, 'srd')
    c['wo_sched'] = mk_wo_sched(c)
    nt = c.get('nt', " nt")
    c['nt'] = nt
    nu = [0]
    def kd(n):
        for _ in range(n):
            if nu[0] < R:
                k_dma(e, nu[0], nt); nu[0] += 1
                if nu[0] % 4 == 0: tsn(e, c, 'ik%d' % nu[0])
    q_issue(e, c, kd)
    tsn(e, c, 'qiss')
    e("s_waitcnt lgkmcnt(0)")
    e("s_add_u32 %s, %s, 0x%x" % (sr(sTA), sr(sM2), C1))
    e("s_add_u32 %s, %s, 0x%x" % (sr(sTB), sr(sTA), C2))
    q_compute(e, c, kd)
    kd(R)
    tsn(e, c, 'qdone')
    kphase2(e, c)
    tsn(e, c, 'kend')
    softmax(e, c)
    c['pump'](16)
    tsn(e, c, 'smend')
    c['vhook'] = mk_vhook(c)
    vphase(e, c)
    tsn(e, c, 'vend')
    tail(e, c)
    tsn(e, c, 'end')
    e.vm0()
    if c.get('tsn'):
        c['ts'] = 1
        ts_store(e, c, len(c['tsn']))
    e.label("L_exitA")
    e("s_endpgm")
    txt = HDR + "; @launch grid=(256,1,1) block=(256,1,1) lds=%d\n" % LDS_A
    txt += HEAD + kernel_text(name, e.text())
    txt += '.section .rodata,"a"\n.p2align 6\n' + kd_text(name, 512, 256)
    return txt

if __name__ == "__main__":
    import json
    cfg = json.loads(sys.argv[2]) if len(sys.argv) > 2 else {}
    open(sys.argv[1], "w").write(build_v2(cfg))
```

```python
from gen2 import *

WS_E1 = 0
WS_E0 = 6 << 20
WS_E2 = 10 << 20
WS_EP = 16 << 20
C1, C2 = 0x9E3779B9, 0x7F4A7C15
sTA, sTB, sM2 = 58, 59, 63
SC = " sc1"
def tsn(e, cfg, name):
    L = cfg.get('tsn')
    if L and name in L:
        e("s_memrealtime %s" % sr(sTS + 2*L.index(name), 2))

def q_issue(e, cfg, kd):
    RAW = 128
    e("s_lshl_b32 %s, s2, 2" % sr(sT0))
    e("s_add_u32 %s, %s, %s" % (sr(sT0), sr(sT0), sr(sW)))
    e("s_mul_i32 %s, %s, 5120" % (sr(sT0), sr(sT0)))
    if WS_E1: e("s_add_u32 %s, %s, 0x%x" % (sr(sT0), sr(sT0), WS_E1))
    e("s_mov_b32 s92, %s" % sr(sT0))
    for k in range(4): e("v_mov_b32 %s, -1" % vr(96+k))
    e("v_lshlrev_b32 v26, 4, v0")
    def clears():
        for k in range(5):
            e("s_add_u32 %s, s92, %d" % (sr(sT0), k*1024))
            e.vmi(("clr", k), "buffer_store_dwordx4 v[96:99], v26, %s, %s offen%s" % (sr(rWS, 4), sr(sT0), SC))
    if cfg.get('pref', 1):
        e("s_lshl_b32 %s, %s, 2" % (sr(sT0), sr(sB)))
        e("s_add_u32 %s, %s, %s" % (sr(sT0), sr(sT0), sr(sSP)))
        e("s_lshl_b32 %s, %s, 2" % (sr(sT0), sr(sT0)))
        e("s_add_u32 %s, %s, %s" % (sr(sT0), sr(sT0), sr(sW)))
        e("s_mul_i32 %s, %s, 28" % (sr(sT0), sr(sT0)))
        e("v_min_u32 v28, 27, v0")
        e("v_add_u32 v28, %s, v28" % sr(sT0))
        e("v_lshrrev_b32 v29, 3, v28")
        e("v_lshlrev_b32 v29, 13, v29")
        e("v_and_b32 v30, 7, v28")
        e("v_lshl_add_u32 v29, v30, 7, v29")
        e("s_lshl_b32 %s, %s, 10" % (sr(sT1), sr(sHKV)))
        e("v_add_u32 v29, %s, v29" % sr(sT1))
        e("v_lshlrev_b32 v28, 7, v28")
        e("s_mul_i32 %s, %s, %d" % (sr(sT1), sr(sHKV), 512*896))
        e("v_add_u32 v28, %s, v28" % sr(sT1))
        e.vmi(("pf", 0), "global_load_dword v30, v29, %s" % sr(sWQ, 2))
        e.vmi(("pf", 1), "global_load_dword v31, v28, %s" % sr(sWO, 2))
    kd(cfg.get('k0', 8))
    for t in range(4):
        e("s_lshl_b32 %s, %s, 6" % (sr(sT0), sr(sW)))
        if t: e("s_add_u32 %s, %s, %d" % (sr(sT0), sr(sT0), t*256))
        if t == 3:
            e("s_cmp_ge_u32 %s, 2" % sr(sW))
            e("s_cselect_b32 %s, 0x40000000, %s" % (sr(sT0), sr(sT0)))
        e.vmi(("x", t), "buffer_load_dwordx4 %s, v15, %s, %s offen" % (ar(4*t, 4), sr(rX, 4), sr(sT0)))
    tsn(e, cfg, 'ix')
    for t in range(4):
        for r in range(8):
            e("s_mov_b32 %s, %d" % (sr(sOFF), (128*t+r)*8192))
            e.vmi(("wq", t, r), "buffer_load_dwordx4 %s, v14, %s, %s offen" % (vr(RAW+32*t+4*r, 4), sr(rWQ, 4), sr(sOFF)))
        tsn(e, cfg, 'iq%d' % t)
    clears()

def q_compute(e, cfg, kd):
    RAW, ACC, TB = 128, 32, 64
    def perms(raw, c):
        buf = TB + 8*(c & 1)
        for jj in range(2):
            j = 2*c+jj
            for p in range(4):
                sel = sPHI if (j & 1) else sPLO
                e("v_perm_b32 %s, %s, %s, %s" % (vr(buf+4*jj+p), vr(raw+4*(2*p+1)+c), vr(raw+4*(2*p)+c), sr(sel)))
    def mf(t, c):
        buf = TB + 8*(c & 1)
        for jj in range(2):
            j = 2*c+jj
            cc = "0" if t == 0 else vr(ACC+4*j, 4)
            e("v_mfma_f32_16x16x32_bf16 %s, %s, %s, %s" % (vr(ACC+4*j, 4), vr(buf+4*jj, 4), ar(4*t, 4), cc))
    left = cfg.get('kmid', 0)
    for t in range(4):
        raw = RAW+32*t
        e.vmw(("wq", t, 7))
        tsn(e, cfg, 'wq%d' % t)
        perms(raw, 0); kd(1); perms(raw, 1); mf(t, 0); kd(1); perms(raw, 2); mf(t, 1); kd(1); perms(raw, 3); mf(t, 2)
        kd(1)
        mf(t, 3)
    e("s_lshl_b32 %s, %s, 13" % (sr(sT0), sr(sW)))
    e("s_add_u32 %s, %s, %d" % (sr(sT0), sr(sT0), PBASE))
    e("v_add_u32 v27, %s, v26" % sr(sT0))
    e.nop(6)
    for j in range(8):
        e.lgi(("qw", j), "ds_write_b128 v27, %s offset:%d" % (vr(ACC+4*j, 4), j*1024))
    kd(2)
    tsn(e, cfg, 'qmf')
    e.vmw(("clr", 4))
    tsn(e, cfg, 'clr')
    e.lg0()
    e("s_barrier")
    tsn(e, cfg, 'qbar')
    e("s_lshl_b32 %s, %s, 11" % (sr(sT0), sr(sW)))
    e("s_add_u32 %s, %s, %d" % (sr(sT0), sr(sT0), PBASE))
    e("v_add_u32 v27, %s, v26" % sr(sT0))
    for jj in range(2):
        for w in range(4):
            e.lgi(("qr", jj, w), "ds_read_b128 %s, v27 offset:%d" % (vr(ACC+16*jj+4*w, 4), w*8192+jj*1024))
    kd(2)
    for jj in range(2):
        e.lgw(("qr", jj, 3))
        b0 = ACC+16*jj
        for k in range(4):
            e("v_add_f32 %s, %s, %s" % (vr(b0+k), vr(b0+k), vr(b0+4+k)))
            e("v_add_f32 %s, %s, %s" % (vr(b0+8+k), vr(b0+8+k), vr(b0+12+k)))
        for k in range(4):
            e("v_add_f32 %s, %s, %s" % (vr(b0+k), vr(b0+k), vr(b0+8+k)))
    e("s_barrier")
    for r in range(4):
        e("v_cvt_pk_bf16_f32 %s, %s, %s" % (vr(64+2*r), vr(ACC+r), vr(ACC+16+r)))
    for g in range(2):
        e("v_mov_b32 %s, %s" % (vr(64+4*g+1), sr(sTA)))
        e("v_mov_b32 %s, %s" % (vr(64+4*g+3), sr(sTB)))
    e("s_lshl_b32 %s, s2, 2" % sr(sT0))
    e("s_add_u32 %s, %s, %s" % (sr(sT0), sr(sT0), sr(sW)))
    e("s_lshl_b32 %s, %s, 11" % (sr(sT0), sr(sT0)))
    e("s_add_u32 %s, %s, 0x%x" % (sr(sT0), sr(sT0), WS_E0))
    for g in range(2):
        e.vmi(("e0s", g), "buffer_store_dwordx4 %s, v26, %s, %s offen offset:%d%s" % (vr(64+4*g, 4), sr(rWS, 4), sr(sT0), g*1024, SC))

def e0_loads(e, tagit=True):
    e("s_lshl_b32 %s, %s, 5" % (sr(sT0), sr(sB)))
    e("s_add_u32 %s, %s, %s" % (sr(sT0), sr(sT0), sr(sHKV)))
    e("s_lshl_b32 %s, %s, 2" % (sr(sT0), sr(sT0)))
    e("s_add_u32 %s, %s, %s" % (sr(sT0), sr(sT0), sr(sW)))
    e("s_lshl_b32 %s, %s, 11" % (sr(sT0), sr(sT0)))
    e("s_add_u32 %s, %s, 0x%x" % (sr(sT0), sr(sT0), WS_E0))
    e("v_lshlrev_b32 v26, 4, v0")
    for p in range(4):
        for g in range(2):
            e.vmi(("e0l", p, g), "buffer_load_dwordx4 %s, v26, %s, %s offen offset:%d%s" % (vr(96+8*p+4*g, 4), sr(rWS, 4), sr(sT0), g*1024, SC))
        if p < 3: e("s_add_u32 %s, %s, %d" % (sr(sT0), sr(sT0), 8*4*2048))

def tagcheck(e, regs):
    first = True
    for r in regs:
        e("v_xor_b32 v28, %s, %s" % (sr(sTA), vr(r+1)))
        e("v_xor_b32 v29, %s, %s" % (sr(sTB), vr(r+3)))
        if first: e("v_or_b32 v27, v28, v29"); first = False
        else: e("v_or3_b32 v27, v27, v28, v29")
    e("v_cmp_ne_u32 vcc, 0, v27")

def e0_finish(e, cfg):
    e.vmw(("e0l", 3, 1))
    keep = list(e.vm)
    regs = [96+8*p+4*g for p in range(4) for g in range(2)]
    tagcheck(e, regs)
    e.nop(4)
    e("s_cbranch_vccz L_e0_ok")
    e.label("L_e0_retry")
    e("s_add_u32 s94, s94, 1")
    e("s_cmp_ge_u32 s94, 0x40000")
    e("s_cbranch_scc1 L_exitA")
    sv = e.vm; e.vm = []
    e0_loads(e)
    e.vm0()
    tagcheck(e, regs)
    e.nop(4)
    e("s_cbranch_vccnz L_e0_retry")
    e.label("L_e0_ok")
    e.vm = keep
    e("v_lshrrev_b32 v28, 4, v0")
    e("v_and_b32 v29, 15, v0")
    e("v_lshlrev_b32 v28, 11, v28")
    e("v_lshl_add_u32 v28, v29, 4, v28")
    e("s_lshl_b32 %s, %s, 2" % (sr(sT0), sr(sW)))
    e("s_add_u32 %s, %s, %d" % (sr(sT0), sr(sT0), PBASE))
    e("v_add_u32 v28, %s, v28" % sr(sT0))
    for p in range(4):
        for r in range(4):
            off = (p & 1)*8192 + (r >> 1)*1024 + (r & 1)*512 + (p >> 1)*256
            e.lgi(("qs", p, r), "ds_write_b32 v28, %s offset:%d" % (vr(96+8*p+2*r), off))
            if len(e.lg) >= 12: e.lgw(e.lg[3])
    e.lg0()
    e("s_barrier")
    for s in range(16):
        if s == 12: e.lgw(("qf", 3))
        e.lgi(("qf", s), "ds_read_b128 %s, v12 offset:%d" % (ar(64+4*s, 4), s*1024))

def k_addr(e, T):
    e("v_add_u32 v26, %d, v17" % ((16*T) % R))
    e("v_cmp_le_u32 vcc, %d, v26" % R)
    e("v_subrev_u32 v27, %d, v26" % R)
    e.nop(1)
    e("v_cndmask_b32 v26, v26, v27, vcc")
    e("v_lshl_add_u32 v18, v26, 10, v16")
    for j in range(1, 8):
        e("v_xor_b32 %s, %d, v18" % (vr(18+j), j << 5))

def kphase2(e, cfg):
    S0, KF = 32, 96
    nt = cfg.get('nt', "")
    wo_sched = cfg['wo_sched']
    def refill(T, shadow=None):
        wl = wo_sched.get(('K', T), [])
        n = len(wl); done = 0
        for i, u in enumerate(range(16*T+R, 16*T+R+16)):
            k_dma(e, u, nt)
            if shadow: shadow(i)
            tgt = ((i+1)*n)//16
            while done < tgt:
                ks, s = wl[done]; wo_load(e, ks, s, RAWO+32*ks+4*s, 14); done += 1
            if T == cfg.get('e0T', 0) and i == cfg.get('e0i', 15): e0_loads(e)
    for T in range(2):
        k_addr(e, T)
        e.vmw(("u", 16*T+15))
        for s in range(16):
            if s == 12: e.lgw(("ka", T, 3))
            e.lgi(("ka", T, s), "ds_read_b128 %s, %s offset:%d" % (ar(128+64*T+4*s, 4), vr(18+(s & 7)), (s >> 3)*256))
        e.lg0()
        if T == 0: wo_vaddr(e, 14, 28, 29)
        refill(T)
        tsn(e, cfg, 't%d' % T)
    e0_finish(e, cfg)
    tsn(e, cfg, 'e0')
    k_addr(e, 2)
    e.lg0()
    def tile_lds(T):
        e.vmw(("u", 16*T+15))
        def rd(s):
            e.lgi(("kr", T, s), "ds_read_b128 %s, %s offset:%d" % (vr(KF+4*(s & 7), 4), vr(18+(s & 7)), (s >> 3)*256))
        for s in range(8): rd(s)
        for s in range(16):
            e.lgw(("kr", T, s))
            cc = "0" if s == 0 else vr(S0+16*T, 16)
            e("v_mfma_f32_32x32x16_bf16 %s, %s, %s, %s" % (vr(S0+16*T, 16), vr(KF+4*(s & 7), 4), ar(64+4*s, 4), cc))
            if s+8 < 16: rd(s+8)
    tile_lds(2)
    deferred = [(T, s) for T in range(2) for s in range(16)]
    def shadow(i):
        for T, s in deferred[2*i:2*i+2]:
            cc = "0" if s == 0 else vr(S0+16*T, 16)
            e("v_mfma_f32_32x32x16_bf16 %s, %s, %s, %s" % (vr(S0+16*T, 16), ar(128+64*T+4*s, 4), ar(64+4*s, 4), cc))
    refill(2, shadow)
    k_addr(e, 3)
    tile_lds(3)
    tsn(e, cfg, 'k3')
    pend = list(range(48+R, 48+R+16))
    wl = list(wo_sched.get(('K', 3), []))
    cnt = [0]
    def pump(n):
        for _ in range(n):
            if pend:
                k_dma(e, pend.pop(0), nt); cnt[0] += 1
                if wl and cnt[0] % 2 == 0:
                    ks, s_ = wl.pop(0); wo_load(e, ks, s_, RAWO+32*ks+4*s_, 14)
        if not pend:
            while wl:
                ks, s_ = wl.pop(0); wo_load(e, ks, s_, RAWO+32*ks+4*s_, 14)
    cfg['pump'] = pump

def mk_vhook(cfg):
    sched = cfg['wo_sched']; t0 = cfg.get('tr0', 0); per = cfg.get('trper', 1)
    def vhook(e, t):
        for ks, s_ in sched.get(('V', t), []):
            wo_load(e, ks, s_, RAWO+32*ks+4*s_, 14)
        for c in range(per):
            idx = (t-t0)*per + c
            if t >= t0 and idx < 32:
                ks, j = idx >> 3, idx & 7
                if j == 0: e.vmw(("wo", ks, 7))
                transpose8(e, RAWO+32*ks, WOF[ks], cols=[j])
    return vhook
def mk_wo_sched(cfg):
    allw = [(ks, s_) for ks in range(4) for s_ in range(8)]
    plan = cfg.get('woplan', [["K",0,8],["K",1,8],["K",2,8],["K",3,8]])
    sched = {}; i = 0
    for kind, idx, n in plan:
        sched[(kind, idx)] = allw[i:i+n]; i += n
    assert i == 32
    return sched

E1R = (64, 80, 224)
E1S = (240, 244, 248)
def e1_loads(e):
    for k in range(1, 4):
        e("s_add_u32 %s, %s, %d" % (sr(sT0), sr(sSP), k))
        e("s_and_b32 %s, %s, 3" % (sr(sT0), sr(sT0)))
        e("s_lshl_b32 %s, %s, 2" % (sr(sT1), sr(sB)))
        e("s_add_u32 %s, %s, %s" % (sr(sT0), sr(sT0), sr(sT1)))
        e("s_lshl_b32 %s, %s, 3" % (sr(sT0), sr(sT0)))
        e("s_add_u32 %s, %s, %s" % (sr(sT0), sr(sT0), sr(sHKV)))
        e("s_lshl_b32 %s, %s, 2" % (sr(sT0), sr(sT0)))
        e("s_add_u32 %s, %s, %s" % (sr(sT0), sr(sT0), sr(sW)))
        e("s_mul_i32 %s, %s, 5120" % (sr(sT0), sr(sT0)))
        if WS_E1: e("s_add_u32 %s, %s, 0x%x" % (sr(sT0), sr(sT0), WS_E1))
        for r4 in range(4):
            e.vmi(("e1l", k, r4), "buffer_load_dwordx4 %s, v26, %s, %s offen offset:%d%s" % (vr(E1R[k-1]+4*r4, 4), sr(rWS, 4), sr(sT0), r4*1024, SC))
        e("s_add_u32 %s, %s, 4096" % (sr(sT0), sr(sT0)))
        e.vmi(("e1l", k, 4), "buffer_load_dwordx4 %s, v26, %s, %s offen%s" % (vr(E1S[k-1], 4), sr(rWS, 4), sr(sT0), SC))

def e1_check(e):
    regs = [b+i for b in E1R for i in range(16)] + [b+i for b in E1S for i in range(4)]
    e("v_max3_u32 v27, %s, %s, %s" % (vr(regs[0]), vr(regs[1]), vr(regs[2])))
    e("v_max3_u32 v28, %s, %s, %s" % (vr(regs[3]), vr(regs[4]), vr(regs[5])))
    i = 6; tog = 0
    while i < len(regs):
        d = 27+tog
        e("v_max3_u32 %s, %s, %s, %s" % (vr(d), vr(d), vr(regs[i]), vr(regs[i+1]))); i += 2; tog ^= 1
    e("v_max_u32 v27, v27, v28")
    e("v_cmp_eq_u32 vcc, -1, v27")

def tail(e, cfg):
    PK = 80
    PK = 224
    e("v_lshlrev_b32 v26, 4, v0")
    e("s_mov_b32 %s, 0xfffffffe" % sr(sM2))
    e.nop(10)
    for k in range(16):
        e("v_cvt_pk_bf16_f32 %s, %s, %s" % (vr(PK+k), vr(OACC+2*k), vr(OACC+2*k+1)))
    for k in range(16):
        e("v_min_u32 %s, %s, %s" % (vr(PK+k), sr(sM2), vr(PK+k)))
    e("v_min_u32 v240, %s, v31" % sr(sM2))
    e("v_min_u32 v241, %s, v30" % sr(sM2))
    e("v_mov_b32 v242, v240")
    e("v_mov_b32 v243, v241")
    for r4 in range(4):
        e.vmi(("e1s", r4), "buffer_store_dwordx4 %s, v26, %s, s92 offen offset:%d%s" % (vr(PK+4*r4, 4), sr(rWS, 4), r4*1024, SC))
    e("s_add_u32 %s, s92, 4096" % sr(sT0))
    e.vmi(("e1s", 4), "buffer_store_dwordx4 v[240:243], v26, %s, %s offen%s" % (sr(rWS, 4), sr(sT0), SC))
    tsn(e, cfg, 'e1s')
    e("s_nop 1")
    e.label("L_e1_retry")
    e("s_add_u32 s94, s94, 1")
    e("s_cmp_ge_u32 s94, 0x40000")
    e("s_cbranch_scc1 L_exitA")
    e1_loads(e)
    e.vm0()
    e1_check(e)
    e.nop(4)
    e("s_cbranch_vccnz L_e1_retry")
    tsn(e, cfg, 'e1')
    m = [31] + [b for b in E1S]; l = [30] + [b+1 for b in E1S]
    e("v_max3_f32 v28, %s, %s, %s" % (vr(m[0]), vr(m[1]), vr(m[2])))
    e("v_max_f32 v28, v28, %s" % vr(m[3]))
    W = [18, 19, 20, 21]
    for j in range(4): e("v_sub_f32 %s, %s, v28" % (vr(W[j]), vr(m[j])))
    for j in range(4): e("v_exp_f32 %s, %s" % (vr(W[j]), vr(W[j])))
    e.nop(1)
    e("v_mul_f32 v28, %s, %s" % (vr(W[0]), vr(l[0])))
    for j in range(1, 4): e("v_fmac_f32 v28, %s, %s" % (vr(W[j]), vr(l[j])))
    e("v_rcp_f32 v28, v28")
    e.nop(1)
    for j in range(4): e("v_mul_f32 %s, %s, v28" % (vr(W[j]), vr(W[j])))
    e("s_mov_b32 %s, 0xffff0000" % sr(sT2))
    for k in range(32): e("v_mul_f32 %s, %s, %s" % (vr(OACC+k), vr(OACC+k), vr(W[0])))
    for j in range(1, 4):
        for k in range(16):
            src = vr(E1R[j-1]+k)
            d = 28 + 2*(k & 0)
            e("v_lshlrev_b32 v28, 16, %s" % src)
            e("v_and_b32 v29, %s, %s" % (sr(sT2), src))
            e("v_fmac_f32 %s, v28, %s" % (vr(OACC+2*k), vr(W[j])))
            e("v_fmac_f32 %s, v29, %s" % (vr(OACC+2*k+1), vr(W[j])))
    OF = 64
    for k in range(16):
        e("v_cvt_pk_bf16_f32 %s, %s, %s" % (vr(OF+k), vr(OACC+2*k), vr(OACC+2*k+1)))
    e.nop(2)
    ACC = 32
    for ks in range(4):
        for j in range(8):
            c = "0" if ks == 0 else vr(ACC+4*j, 4)
            e("v_mfma_f32_16x16x32_bf16 %s, %s, %s, %s" % (vr(ACC+4*j, 4), vr(WOF[ks]+4*j, 4), vr(OF+4*ks, 4), c))
    e("v_add_u32 v27, %s, v26" % sr(sRING))
    e("v_bfe_u32 v28, v0, 1, 3")
    e("v_lshlrev_b32 v28, 14, v28")
    e("v_lshrrev_b32 v29, 4, v0")
    e("v_lshl_add_u32 v28, v29, 5, v28")
    e("v_and_b32 v29, 1, v0")
    e("v_lshl_add_u32 v25, v29, 4, v28")
    e.nop(2)
    for j in range(8):
        e.lgi(("opw", j), "ds_write_b128 v27, %s offset:%d" % (vr(ACC+4*j, 4), j*1024))
    e.lg0()
    e("s_barrier")
    e("s_lshl_b32 %s, %s, 11" % (sr(sT0), sr(sW)))
    e("v_add_u32 v27, %s, v26" % sr(sT0))
    T = ACC
    for jj in range(2):
        for w in range(3):
            e.lgi(("opr", jj, w), "ds_read_b128 %s, v27 offset:%d" % (vr(T+16*jj+4*w, 4), jj*1024 + w*RING))
    e("v_add_u32 v28, %d, v27" % (3*RING))
    for jj in range(2):
        e.lgi(("opr3", jj), "ds_read_b128 %s, v28 offset:%d" % (vr(T+16*jj+12, 4), jj*1024))
    e("s_lshl_b32 %s, %s, 2" % (sr(sT0), sr(sB)))
    e("s_add_u32 %s, %s, %s" % (sr(sT0), sr(sT0), sr(sSP)))
    e("s_lshl_b32 %s, %s, 17" % (sr(sT0), sr(sT0)))
    e("s_add_u32 %s, %s, 0x%x" % (sr(sT0), sr(sT0), WS_E2))
    e("s_lshl_b32 %s, %s, 12" % (sr(sT1), sr(sW)))
    e("s_add_u32 %s, %s, %s" % (sr(sT0), sr(sT0), sr(sT1)))
    e("s_lshl_b32 %s, %s, 7" % (sr(sT1), sr(sHKV)))
    e("s_add_u32 %s, %s, %s" % (sr(sT1), sr(sT1), sr(sT0)))
    e("s_lshl_b32 %s, %s, 14" % (sr(sT2), sr(sHKV)))
    e("s_add_u32 s93, %s, %s" % (sr(sT2), sr(sT0)))
    e.lg0()
    G = 64
    for jj in range(2):
        b0 = T+16*jj
        for k in range(4):
            e("v_add_f32 %s, %s, %s" % (vr(b0+k), vr(b0+k), vr(b0+4+k)))
            e("v_add_f32 %s, %s, %s" % (vr(b0+8+k), vr(b0+8+k), vr(b0+12+k)))
        for r in range(4):
            g = G + 4*(2*jj+(r >> 1)) + 2*(r & 1)
            e("v_add_f32 %s, %s, %s" % (vr(g), vr(b0+r), vr(b0+8+r)))
    for t in range(4):
        e("v_mov_b32 %s, %s" % (vr(G+4*t+1), sr(sTA)))
        e("v_mov_b32 %s, %s" % (vr(G+4*t+3), sr(sTB)))
    for t in range(4):
        e.vmi(("e2s", t), "buffer_store_dwordx4 %s, v25, %s, %s offen offset:%d%s" % (vr(G+4*t, 4), sr(rWS, 4), sr(sT1), t*1024, SC))
    tsn(e, cfg, 'e2s')
    e("v_and_b32 v28, 1, v0")
    e("s_lshl_b32 %s, %s, 1" % (sr(sT2), sr(sHKV)))
    e("v_add_u32 v28, %s, v28" % sr(sT2))
    e("v_mul_u32_u24 v28, 896, v28")
    e("v_bfe_u32 v29, v0, 1, 2")
    e("v_lshl_add_u32 v28, v29, 6, v28")
    e("v_bfe_u32 v30, v0, 5, 1")
    e("v_bfe_u32 v31, v0, 4, 1")
    e("v_lshl_add_u32 v30, v30, 1, v31")
    e("v_lshl_add_u32 v28, v30, 4, v28")
    e("s_mul_i32 %s, %s, 14336" % (sr(sT2), sr(sB)))
    e("s_mul_i32 %s, %s, 224" % (sr(sT3), sr(sSP)))
    e("s_add_u32 %s, %s, %s" % (sr(sT2), sr(sT2), sr(sT3)))
    e("s_lshl_b32 %s, %s, 2" % (sr(sT3), sr(sW)))
    e("s_add_u32 %s, %s, %s" % (sr(sT2), sr(sT2), sr(sT3)))
    e("v_add_u32 v24, %s, v28" % sr(sT2))
    e("v_lshl_add_u32 v29, v29, 2, v30")
    e("v_bfe_u32 v31, v0, 3, 1")
    e("v_lshl_add_u32 v29, v31, 4, v29")
    e("v_mov_b32 v31, 0x40000000")
    e("v_cmp_le_u32 vcc, 14, v29")
    e.nop(2)
    e("v_cndmask_b32 v24, v24, v31, vcc")
    F = 80
    e.label("L_e2_retry")
    e("s_add_u32 s94, s94, 1")
    e("s_cmp_ge_u32 s94, 0x40000")
    e("s_cbranch_scc1 L_exitA")
    for t in range(4):
        e.vmi(("e2l", t), "buffer_load_dwordx4 %s, v26, %s, s93 offen offset:%d%s" % (vr(F+4*t, 4), sr(rWS, 4), t*1024, SC))
    e.vm0()
    tagcheck(e, [F+4*t for t in range(4)])
    e.nop(4)
    e("s_cbranch_vccnz L_e2_retry")
    tsn(e, cfg, 'e2')
    V = lambda jj, r: F + 4*(2*jj+(r >> 1)) + 2*(r & 1)
    for jj in range(2):
        for r in range(2):
            e("v_permlane32_swap_b32 %s, %s" % (vr(V(jj, r)), vr(V(jj, r+2))))
    e.nop(2)
    for jj in range(2):
        for r in range(2):
            e("v_add_f32 %s, %s, %s" % (vr(V(jj, r)), vr(V(jj, r)), vr(V(jj, r+2))))
    e.nop(2)
    for jj in range(2):
        e("v_permlane16_swap_b32 %s, %s" % (vr(V(jj, 0)), vr(V(jj, 1))))
    e.nop(2)
    for jj in range(2):
        e("v_add_f32 %s, %s, %s" % (vr(V(jj, 0)), vr(V(jj, 0)), vr(V(jj, 1))))
    e.nop(2)
    for jj in range(2):
        e("v_add_f32_dpp %s, %s, %s row_ror:8 row_mask:0xf bank_mask:0xf" % (vr(V(jj, 1)), vr(V(jj, 0)), vr(V(jj, 0))))
    e.nop(2)
    e("v_cvt_pk_bf16_f32 v30, %s, %s" % (vr(V(0, 1)), vr(V(1, 1))))
    e("buffer_store_dword v30, v24, %s, 0 offen" % sr(rOUT, 4))
    e("s_and_b32 %s, s2, 31" % sr(sT0))
    e("s_or_b32 %s, %s, %s" % (sr(sT0), sr(sT0), sr(sW)))
    e("s_cmp_lg_u32 %s, 0" % sr(sT0))
    e("s_cbranch_scc1 L_nobump")
    e("v_mov_b32 v30, %s" % sr(sTA))
    e("v_mov_b32 v31, 0")
    e("s_lshl_b32 %s, %s, 8" % (sr(sT0), sr(sB)))
    e("s_add_u32 %s, %s, 0x%x" % (sr(sT0), sr(sT0), WS_EP))
    e("s_mov_b64 exec, 1")
    e("buffer_store_dword v30, v31, %s, %s offen%s" % (sr(rWS, 4), sr(sT0), SC))
    e.label("L_nobump")

def build_v2(cfg):
    name = "standalone__gqa_block_cached__sampling_kernel"
    e = Em(); c = dict(cfg); c['exit'] = "L_exitA"; c['uid'] = 0
    tsn(e, c, 'start')
    common_prologue(e, 256, c)
    e("s_mov_b32 s94, 0")
    attn_setup(e, c)
    e("v_lshrrev_b32 v28, 4, v0")
    e("v_and_b32 v29, 15, v0")
    e("v_lshlrev_b32 v30, 16, v28")
    e("v_lshl_add_u32 v30, v29, 4, v30")
    e("s_lshl_b32 %s, %s, 18" % (sr(sT0), sr(sW)))
    e("v_add_u32 v14, %s, v30" % sr(sT0))
    e("s_lshl_b32 %s, %s, 8" % (sr(sT3), sr(sB)))
    e("s_add_u32 %s, %s, 0x%x" % (sr(sT3), sr(sT3), WS_EP))
    e("s_waitcnt lgkmcnt(0)")
    e("s_load_dword %s, %s, %s" % (sr(sM2), sr(sWS, 2), sr(sT3)))
    attn_srds(e)
    e("s_lshl_b32 %s, %s, 10" % (sr(sT0), sr(sHKV)))
    e("s_lshl_b32 %s, %s, 8" % (sr(sT1), sr(sSP)))
    e("s_add_u32 %s, %s, %s" % (sr(sT0), sr(sT0), sr(sT1)))
    e("s_add_u32 %s, %s, %s" % (sr(rWQ), sr(sWQ), sr(sT0)))
    e("s_addc_u32 %s, %s, 0" % (sr(rWQ+1), sr(sWQ+1)))
    e("s_sub_u32 %s, %d, %s" % (sr(rWQ+2), 448*8192, sr(sT0)))
    wo_srd(e)
    tsn(e, c, 'srd')
    c['wo_sched'] = mk_wo_sched(c)
    nt = c.get('nt', " nt")
    c['nt'] = nt
    nu = [0]
    def kd(n):
        for _ in range(n):
            if nu[0] < R:
                k_dma(e, nu[0], nt); nu[0] += 1
                if nu[0] % 4 == 0: tsn(e, c, 'ik%d' % nu[0])
    q_issue(e, c, kd)
    tsn(e, c, 'qiss')
    e("s_waitcnt lgkmcnt(0)")
    e("s_add_u32 %s, %s, 0x%x" % (sr(sTA), sr(sM2), C1))
    e("s_add_u32 %s, %s, 0x%x" % (sr(sTB), sr(sTA), C2))
    q_compute(e, c, kd)
    kd(R)
    tsn(e, c, 'qdone')
    kphase2(e, c)
    tsn(e, c, 'kend')
    softmax(e, c)
    c['pump'](16)
    tsn(e, c, 'smend')
    c['vhook'] = mk_vhook(c)
    vphase(e, c)
    tsn(e, c, 'vend')
    tail(e, c)
    tsn(e, c, 'end')
    e.vm0()
    if c.get('tsn') and c.get('dbg'):
        n = len(c['tsn'])
        e("s_waitcnt lgkmcnt(0)")
        e("s_mov_b64 exec, 1")
        e("v_mov_b32 v1, 0")
        for i in range(n):
            e("v_mov_b32 v2, %s" % sr(sTS+2*i))
            e("global_atomic_add v1, v2, s[16:17] offset:%d" % (4*i))
        e("s_not_b32 s20, %s" % sr(sTS))
        e("v_mov_b32 v2, s20")
        e("global_atomic_umax v1, v2, s[16:17] offset:56")
        e("v_mov_b32 v2, %s" % sr(sTS+2*(n-1)))
        e("global_atomic_umax v1, v2, s[16:17] offset:60")
        e.vm0()
    elif c.get('tsn'):
        c['ts'] = 1
        ts_store(e, c, len(c['tsn']))
    e.label("L_exitA")
    e("s_endpgm")
    txt = HDR + "; @launch grid=(256,1,1) block=(256,1,1) lds=%d\n" % LDS_A
    txt += HEAD + kernel_text(name, e.text())
    txt += '.section .rodata,"a"\n.p2align 6\n' + kd_text(name, 512, 256)
    return txt

if __name__ == "__main__":
    import json
    cfg = json.loads(sys.argv[2]) if len(sys.argv) > 2 else {}
    open(sys.argv[1], "w").write(build_v2(cfg))
```

```python
import sys, math

class Em:
    def __init__(self):
        self.L = []
        self.vm = []
        self.lg = []
    def __call__(self, s):
        self.L.append("    " + s)
    def label(self, s):
        self.L.append(s + ":")
    def c(self, s):
        self.L.append("    ; " + s)
    def vmi(self, tag, s):
        self(s); self.vm.append(tag)
    def lgi(self, tag, s):
        self(s); self.lg.append(tag)
    def _wait(self, lst, tag, name, mx):
        idx = None
        for i, t in enumerate(lst):
            if t == tag: idx = i
        if idx is None:
            return lst
        n = len(lst) - 1 - idx
        if n <= mx:
            self("s_waitcnt %s(%d)" % (name, n))
        else:
            raise Exception("too many outstanding for %s: %d" % (name, n))
        return lst[idx+1:]
    def vmw(self, tag):
        self.vm = self._wait(self.vm, tag, "vmcnt", 63)
    def lgw(self, tag):
        self.lg = self._wait(self.lg, tag, "lgkmcnt", 15)
    def vm0(self):
        self("s_waitcnt vmcnt(0)"); self.vm = []
    def lg0(self):
        self("s_waitcnt lgkmcnt(0)"); self.lg = []
    def nop(self, n):
        while n > 0:
            k = min(n, 16); self("s_nop %d" % (k-1)); n -= k
    def text(self):
        return "\n".join(self.L)

def vr(a, n=1): return "v%d" % a if n == 1 else "v[%d:%d]" % (a, a+n-1)
def ar(a, n=1): return "a%d" % a if n == 1 else "a[%d:%d]" % (a, a+n-1)
def sr(a, n=1): return "s%d" % a if n == 1 else "s[%d:%d]" % (a, a+n-1)

R = 30
RING = R*1024
PBASE = 4*RING
MAXB = PBASE + 32768
SUMB = MAXB + 1024
LDS_A = SUMB + 1024
WS_PART = 0
WS_STATS = 4 << 20
WS_OP2 = 5 << 20
WS_FLAG = 8 << 20
WS_TS = 9 << 20
SCALE = math.log2(math.e)/16.0

def f2u(x):
    import struct
    return struct.unpack("<I", struct.pack("<f", x))[0]

sX, sK, sV, sWQ, sWO, sOUT, sDBG, sWS = 4, 6, 8, 10, 12, 14, 16, 18
rK, rV, rWQ, rX, rWS, rWO, rOUT = 20, 24, 28, 32, 36, 40, 44
sW, sHKV, sSP, sB, sRING, sOFF, sT0, sT1, sT2, sT3 = 48, 49, 50, 51, 52, 53, 54, 55, 56, 57
sPLO, sPHI, sSC = 60, 61, 62
sTS = 64

def srd(e, r, ptr, off_s, size):
    if off_s is None:
        e("s_mov_b32 %s, %s" % (sr(r), sr(ptr)))
        e("s_mov_b32 %s, %s" % (sr(r+1), sr(ptr+1)))
    else:
        e("s_add_u32 %s, %s, %s" % (sr(r), sr(ptr), sr(off_s)))
        e("s_addc_u32 %s, %s, 0" % (sr(r+1), sr(ptr+1)))
    e("s_mov_b32 %s, 0x%x" % (sr(r+2), size))
    e("s_mov_b32 %s, 0x00020000" % sr(r+3))

def common_prologue(e, nwg, cfg):
    e("s_cmp_ge_u32 s2, %d" % nwg)
    e("s_cbranch_scc1 %s" % cfg['exit'])
    e("s_load_dwordx16 s[4:19], s[0:1], 0")
    e("v_lshrrev_b32 v1, 6, v0")
    e("v_and_b32 v0, 63, v0")
    e("s_and_b32 %s, s2, 7" % sr(sHKV))
    e("v_readfirstlane_b32 %s, v1" % sr(sW))
    e("s_lshr_b32 %s, s2, 3" % sr(sSP))
    e("s_and_b32 %s, %s, 3" % (sr(sSP), sr(sSP)))
    e("s_lshr_b32 %s, s2, 5" % sr(sB))
    e("s_mov_b32 %s, 0x05040100" % sr(sPLO))
    e("s_mov_b32 %s, 0x07060302" % sr(sPHI))

def ts(e, cfg, idx):
    if cfg.get('ts'):
        e("s_memrealtime %s" % sr(sTS + 2*idx, 2))

def ts_store(e, cfg, n):
    if not cfg.get('ts'): return
    e("s_waitcnt lgkmcnt(0)")
    e("s_lshl_b32 %s, s2, 2" % sr(sT0))
    e("s_add_u32 %s, %s, %s" % (sr(sT0), sr(sT0), sr(sW)))
    e("s_lshl_b32 %s, %s, 7" % (sr(sT0), sr(sT0)))
    e("s_add_u32 %s, %s, 0x%x" % (sr(sT0), sr(sT0), WS_TS))
    e("v_mov_b32 v1, %s" % sr(sT0))
    for i in range(n):
        e("v_mov_b32 v2, %s" % sr(sTS+2*i))
        e("v_mov_b32 v3, %s" % sr(sTS+2*i+1))
        e("global_store_dwordx2 v1, v[2:3], %s offset:%d" % (sr(sWS, 2), 8*i))

def wo_srd(e):
    e("s_lshl_b32 %s, %s, 3" % (sr(sT0), sr(sHKV)))
    e("s_add_u32 %s, %s, %s" % (sr(sT0), sr(sT0), sr(sW)))
    e("s_mul_i32 %s, %s, %d" % (sr(sT0), sr(sT0), 64*896))
    e("s_lshl_b32 %s, %s, 8" % (sr(sT1), sr(sSP)))
    e("s_add_u32 %s, %s, %s" % (sr(sT0), sr(sT0), sr(sT1)))
    e("s_add_u32 %s, %s, %s" % (sr(rWO), sr(sWO), sr(sT0)))
    e("s_addc_u32 %s, %s, 0" % (sr(rWO+1), sr(sWO+1)))
    e("s_sub_u32 %s, %d, %s" % (sr(rWO+2), 4096*896, sr(sT0)))
    e("s_mov_b32 %s, 0x00020000" % sr(rWO+3))

def wo_vaddr(e, v, t0, t1):
    e("v_lshrrev_b32 %s, 4, v0" % vr(t0))
    e("v_and_b32 %s, 1, %s" % (vr(t1), vr(t0)))
    e("v_lshlrev_b32 %s, 8, %s" % (vr(t1), vr(t1)))
    e("v_lshrrev_b32 %s, 1, %s" % (vr(t0), vr(t0)))
    e("v_lshl_add_u32 %s, %s, 2, %s" % (vr(t1), vr(t0), vr(t1)))
    e("v_mul_u32_u24 %s, 896, %s" % (vr(t1), vr(t1)))
    e("v_and_b32 %s, 15, v0" % vr(t0))
    e("v_lshl_add_u32 %s, %s, 4, %s" % (vr(v), vr(t0), vr(t1)))
    e("s_cmp_eq_u32 %s, 3" % sr(sSP))
    e("s_cselect_b32 %s, 8, 16" % sr(sT0))
    e("v_cmp_le_u32 vcc, %s, %s" % (sr(sT0), vr(t0)))
    e("v_mov_b32 %s, 0x40000000" % vr(t1))
    e("s_nop 1")
    e("v_cndmask_b32 %s, %s, %s, vcc" % (vr(v), vr(v), vr(t1)))

def wo_load(e, kstep, s, dst, vaddr):
    d, ee = kstep >> 1, kstep & 1
    off = (32*d + 16*ee + 8*(s >> 2) + (s & 3))*896
    e("s_mov_b32 %s, %d" % (sr(sOFF), off))
    e.vmi(("wo", kstep, s), "buffer_load_dwordx4 %s, %s, %s, %s offen" % (vr(dst, 4), vr(vaddr), sr(rWO, 4), sr(sOFF)))

def transpose8(e, raw, dst, cols=range(8)):
    for j in cols:
        for p in range(4):
            sel = sPHI if (j & 1) else sPLO
            e("v_perm_b32 %s, %s, %s, %s" % (vr(dst+4*j+p), vr(raw+4*(2*p+1)+(j >> 1)), vr(raw+4*(2*p)+(j >> 1)), sr(sel)))

def outproj_tail(e, cfg, OF, WOF, ACC, ldsbase, sc):
    for ks in range(4):
        for j in range(8):
            c = "0" if ks == 0 else vr(ACC+4*j, 4)
            e("v_mfma_f32_16x16x32_bf16 %s, %s, %s, %s" % (vr(ACC+4*j, 4), vr(WOF[ks]+4*j, 4), vr(OF+4*ks, 4), c))
    e("s_lshl_b32 %s, %s, 13" % (sr(sT0), sr(sW)))
    e("s_add_u32 %s, %s, %d" % (sr(sT0), sr(sT0), ldsbase))
    e("v_lshlrev_b32 v26, 4, v0")
    e("v_add_u32 v27, %s, v26" % sr(sT0))
    e.nop(6)
    for j in range(8):
        e.lgi(("opw", j), "ds_write_b128 v27, %s offset:%d" % (vr(ACC+4*j, 4), j*1024))
    e.lg0()
    e("s_barrier")
    e("s_lshl_b32 %s, %s, 11" % (sr(sT0), sr(sW)))
    e("s_add_u32 %s, %s, %d" % (sr(sT0), sr(sT0), ldsbase))
    e("v_add_u32 v27, %s, v26" % sr(sT0))
    T = ACC
    for jj in range(2):
        for w in range(4):
            e.lgi(("opr", jj, w), "ds_read_b128 %s, v27 offset:%d" % (vr(T+16*jj+4*w, 4), w*8192+jj*1024))
    e("s_lshl_b32 %s, %s, 2" % (sr(sT0), sr(sB)))
    e("s_add_u32 %s, %s, %s" % (sr(sT0), sr(sT0), sr(sSP)))
    e("s_lshl_b32 %s, %s, 3" % (sr(sT0), sr(sT0)))
    e("s_add_u32 %s, %s, %s" % (sr(sT0), sr(sT0), sr(sHKV)))
    e("s_lshl_b32 %s, %s, 13" % (sr(sT0), sr(sT0)))
    e("s_lshl_b32 %s, %s, 11" % (sr(sT1), sr(sW)))
    e("s_add_u32 %s, %s, %s" % (sr(sT0), sr(sT0), sr(sT1)))
    e("s_add_u32 %s, %s, 0x%x" % (sr(sT0), sr(sT0), WS_OP2))
    for jj in range(2):
        e.lgw(("opr", jj, 3))
        b0 = T+16*jj
        for k in range(4):
            e("v_add_f32 %s, %s, %s" % (vr(b0+k), vr(b0+k), vr(b0+4+k)))
            e("v_add_f32 %s, %s, %s" % (vr(b0+8+k), vr(b0+8+k), vr(b0+12+k)))
        for k in range(4):
            e("v_add_f32 %s, %s, %s" % (vr(b0+k), vr(b0+k), vr(b0+8+k)))
        e.vmi(("op2", jj), "buffer_store_dwordx4 %s, v26, %s, %s offen offset:%d%s" % (vr(b0, 4), sr(rWS, 4), sr(sT0), jj*1024, sc))

def final_reduce(e, cfg, sc, T=32):
    e("v_and_b32 v26, 7, v0")
    e("v_bfe_u32 v27, v0, 3, 2")
    e("v_lshrrev_b32 v28, 5, v0")
    e("s_lshl_b32 %s, %s, 1" % (sr(sT0), sr(sHKV)))
    e("v_add_u32 v28, %s, v28" % sr(sT0))
    e("v_lshlrev_b32 v29, 10, v26")
    e("v_lshl_add_u32 v30, v27, 4, v28")
    e("v_lshl_add_u32 v29, v30, 4, v29")
    e("s_lshl_b32 %s, %s, 2" % (sr(sT0), sr(sB)))
    e("s_add_u32 %s, %s, %s" % (sr(sT0), sr(sT0), sr(sSP)))
    e("s_lshl_b32 %s, %s, 16" % (sr(sT0), sr(sT0)))
    e("s_add_u32 %s, %s, 0x%x" % (sr(sT0), sr(sT0), WS_OP2))
    for p in range(8):
        e.vmi(("fr", p), "buffer_load_dwordx4 %s, v29, %s, %s offen%s" % (vr(T+4*p, 4), sr(rWS, 4), sr(sT0), sc))
        if p < 7: e("s_add_u32 %s, %s, 8192" % (sr(sT0), sr(sT0)))
    e("v_mul_u32_u24 v30, 896, v28")
    e("v_lshl_add_u32 v30, v27, 6, v30")
    e("v_lshl_add_u32 v30, v26, 1, v30")
    e("s_mul_i32 %s, %s, 14336" % (sr(sT1), sr(sB)))
    e("s_mul_i32 %s, %s, 224" % (sr(sT2), sr(sSP)))
    e("s_add_u32 %s, %s, %s" % (sr(sT1), sr(sT1), sr(sT2)))
    e("v_add_u32 v30, %s, v30" % sr(sT1))
    e("v_mov_b32 v31, 0x40000000")
    e("v_cmp_eq_u32 vcc, 3, v27")
    e.nop(2)
    e("v_cndmask_b32 v31, v30, v31, vcc")
    e.vmw(("fr", 3))
    for k in range(4):
        e("v_add_f32 %s, %s, %s" % (vr(T+k), vr(T+k), vr(T+4+k)))
        e("v_add_f32 %s, %s, %s" % (vr(T+8+k), vr(T+8+k), vr(T+12+k)))
    e.vmw(("fr", 7))
    for k in range(4):
        e("v_add_f32 %s, %s, %s" % (vr(T+16+k), vr(T+16+k), vr(T+20+k)))
        e("v_add_f32 %s, %s, %s" % (vr(T+24+k), vr(T+24+k), vr(T+28+k)))
    for k in range(4):
        e("v_add_f32 %s, %s, %s" % (vr(T+k), vr(T+k), vr(T+8+k)))
        e("v_add_f32 %s, %s, %s" % (vr(T+16+k), vr(T+16+k), vr(T+24+k)))
    for k in range(4):
        e("v_add_f32 %s, %s, %s" % (vr(T+k), vr(T+k), vr(T+16+k)))
    e("v_cvt_pk_bf16_f32 %s, %s, %s" % (vr(T+4), vr(T), vr(T+1)))
    e("v_cvt_pk_bf16_f32 %s, %s, %s" % (vr(T+5), vr(T+2), vr(T+3)))
    e("v_lshrrev_b32 %s, 16, %s" % (vr(T+6), vr(T+4)))
    e("v_lshrrev_b32 %s, 16, %s" % (vr(T+7), vr(T+5)))
    e("buffer_store_short %s, v30, %s, 0 offen" % (vr(T+4), sr(rOUT, 4)))
    e("buffer_store_short %s, v30, %s, 0 offen offset:16" % (vr(T+6), sr(rOUT, 4)))
    e("buffer_store_short %s, v31, %s, 0 offen offset:32" % (vr(T+5), sr(rOUT, 4)))
    e("buffer_store_short %s, v31, %s, 0 offen offset:48" % (vr(T+7), sr(rOUT, 4)))
```

```python
from gen2 import *

WS_E1 = 0
WS_E0 = 6 << 20
WS_E2 = 10 << 20
WS_EP = 16 << 20
C1, C2 = 0x9E3779B9, 0x7F4A7C15
sTA, sTB, sM2 = 58, 59, 63
SC = " sc1"
def tsn(e, cfg, name):
    L = cfg.get('tsn')
    if L and name in L:
        e("s_memrealtime %s" % sr(sTS + 2*L.index(name), 2))

def q_issue(e, cfg, kd):
    RAW = 128
    e("s_lshl_b32 %s, s2, 2" % sr(sT0))
    e("s_add_u32 %s, %s, %s" % (sr(sT0), sr(sT0), sr(sW)))
    e("s_mul_i32 %s, %s, 5120" % (sr(sT0), sr(sT0)))
    if WS_E1: e("s_add_u32 %s, %s, 0x%x" % (sr(sT0), sr(sT0), WS_E1))
    e("s_mov_b32 s92, %s" % sr(sT0))
    for k in range(4): e("v_mov_b32 %s, -1" % vr(96+k))
    e("v_lshlrev_b32 v26, 4, v0")
    def clears():
        for k in range(5):
            e("s_add_u32 %s, s92, %d" % (sr(sT0), k*1024))
            e.vmi(("clr", k), "buffer_store_dwordx4 v[96:99], v26, %s, %s offen%s" % (sr(rWS, 4), sr(sT0), SC))
    cp = cfg.get('clrpos', 9)
    if cfg.get('e1tag'): cp = -1
    if cp == 0: clears()
    if cfg.get('pref', 1):
        e("s_lshl_b32 %s, %s, 2" % (sr(sT0), sr(sB)))
        e("s_add_u32 %s, %s, %s" % (sr(sT0), sr(sT0), sr(sSP)))
        e("s_lshl_b32 %s, %s, 2" % (sr(sT0), sr(sT0)))
        e("s_add_u32 %s, %s, %s" % (sr(sT0), sr(sT0), sr(sW)))
        e("s_mul_i32 %s, %s, 28" % (sr(sT0), sr(sT0)))
        e("v_min_u32 v28, 27, v0")
        e("v_add_u32 v28, %s, v28" % sr(sT0))
        e("v_lshrrev_b32 v29, 3, v28")
        e("v_lshlrev_b32 v29, 13, v29")
        e("v_and_b32 v30, 7, v28")
        e("v_lshl_add_u32 v29, v30, 7, v29")
        e("s_lshl_b32 %s, %s, 10" % (sr(sT1), sr(sHKV)))
        e("v_add_u32 v29, %s, v29" % sr(sT1))
        e("v_lshlrev_b32 v28, 7, v28")
        e("s_mul_i32 %s, %s, %d" % (sr(sT1), sr(sHKV), 512*896))
        e("v_add_u32 v28, %s, v28" % sr(sT1))
        e.vmi(("pf", 0), "global_load_dword v30, v29, %s" % sr(sWQ, 2))
        if cfg.get('wopf', 0) == 0: e.vmi(("pf", 1), "global_load_dword v31, v28, %s" % sr(sWO, 2))
        else: e("v_mov_b32 v22, v28")
    if cp == 1: clears()
    if cfg.get('pf2'):
        e("v_mov_b32 v27, 0")
        e("s_lshl_b32 %s, %s, 16" % (sr(sT0), sr(sW)))
        e.vmi(("pf", 2), "buffer_load_dword v24, v27, %s, %s offen" % (sr(rV, 4), sr(sT0)))
        if cfg['pf2'] > 1:
            e("s_lshl_b32 %s, s2, 13" % sr(sT0))
            e("s_add_u32 %s, %s, 0x%x" % (sr(sT0), sr(sT0), WS_E0))
            e.vmi(("pf", 3), "buffer_load_dword v25, v27, %s, %s offen" % (sr(rWS, 4), sr(sT0)))
            e("s_lshl_b32 %s, s2, 14" % sr(sT0))
            e("s_add_u32 %s, %s, 0x%x" % (sr(sT0), sr(sT0), WS_E2))
            e.vmi(("pf", 4), "buffer_load_dword v23, v27, %s, %s offen" % (sr(rWS, 4), sr(sT0)))
            e.vmi(("pf", 5), "buffer_load_dword v22, v27, %s, 0 offen" % (sr(rOUT, 4)))
    kd(cfg.get('k0', 8))
    for t in range(4):
        e("s_lshl_b32 %s, %s, 6" % (sr(sT0), sr(sW)))
        if t: e("s_add_u32 %s, %s, %d" % (sr(sT0), sr(sT0), t*256))
        if t == 3:
            e("s_cmp_ge_u32 %s, 2" % sr(sW))
            e("s_cselect_b32 %s, 0x40000000, %s" % (sr(sT0), sr(sT0)))
        e.vmi(("x", t), "buffer_load_dwordx4 %s, v15, %s, %s offen" % (ar(4*t, 4), sr(rX, 4), sr(sT0)))
    tsn(e, cfg, 'ix')
    for t in range(4):
        for r in range(8):
            e("s_mov_b32 %s, %d" % (sr(sOFF), (128*t+r)*8192))
            e.vmi(("wq", t, r), "buffer_load_dwordx4 %s, v14, %s, %s offen" % (vr(RAW+32*t+4*r, 4), sr(rWQ, 4), sr(sOFF)))
            m = cfg.get('kmix', 0)
            if m and (8*t+r) % m == m-1: kd(1)
        tsn(e, cfg, 'iq%d' % t)
    if cp == 9: clears()

def q_compute(e, cfg, kd):
    RAW, ACC, TB = 128, 32, 64
    def perms(raw, c):
        buf = TB + 8*(c & 1)
        for jj in range(2):
            j = 2*c+jj
            for p in range(4):
                sel = sPHI if (j & 1) else sPLO
                e("v_perm_b32 %s, %s, %s, %s" % (vr(buf+4*jj+p), vr(raw+4*(2*p+1)+c), vr(raw+4*(2*p)+c), sr(sel)))
    def mf(t, c):
        buf = TB + 8*(c & 1)
        for jj in range(2):
            j = 2*c+jj
            cc = "0" if t == 0 else vr(ACC+4*j, 4)
            e("v_mfma_f32_16x16x32_bf16 %s, %s, %s, %s" % (vr(ACC+4*j, 4), vr(buf+4*jj, 4), ar(4*t, 4), cc))
    left = cfg.get('kmid', 0)
    for t in range(4):
        raw = RAW+32*t
        e.vmw(("wq", t, 7))
        tsn(e, cfg, 'wq%d' % t)
        perms(raw, 0); kd(1); perms(raw, 1); mf(t, 0); kd(1); perms(raw, 2); mf(t, 1); kd(1); perms(raw, 3); mf(t, 2)
        kd(1)
        mf(t, 3)
    e("s_lshl_b32 %s, %s, 13" % (sr(sT0), sr(sW)))
    e("s_add_u32 %s, %s, %d" % (sr(sT0), sr(sT0), PBASE))
    e("v_add_u32 v27, %s, v26" % sr(sT0))
    e.nop(6)
    for j in range(8):
        e.lgi(("qw", j), "ds_write_b128 v27, %s offset:%d" % (vr(ACC+4*j, 4), j*1024))
    kd(2)
    tsn(e, cfg, 'qmf')
    if not cfg.get('e1tag'): e.vmw(("clr", 4))
    tsn(e, cfg, 'clr')
    e.lg0()
    e("s_barrier")
    tsn(e, cfg, 'qbar')
    e("s_lshl_b32 %s, %s, 11" % (sr(sT0), sr(sW)))
    e("s_add_u32 %s, %s, %d" % (sr(sT0), sr(sT0), PBASE))
    e("v_add_u32 v27, %s, v26" % sr(sT0))
    for jj in range(2):
        for w in range(4):
            e.lgi(("qr", jj, w), "ds_read_b128 %s, v27 offset:%d" % (vr(ACC+16*jj+4*w, 4), w*8192+jj*1024))
    kd(2)
    for jj in range(2):
        e.lgw(("qr", jj, 3))
        b0 = ACC+16*jj
        for k in range(4):
            e("v_add_f32 %s, %s, %s" % (vr(b0+k), vr(b0+k), vr(b0+4+k)))
            e("v_add_f32 %s, %s, %s" % (vr(b0+8+k), vr(b0+8+k), vr(b0+12+k)))
        for k in range(4):
            e("v_add_f32 %s, %s, %s" % (vr(b0+k), vr(b0+k), vr(b0+8+k)))
    e("s_barrier")
    for r in range(4):
        e("v_cvt_pk_bf16_f32 %s, %s, %s" % (vr(64+2*r), vr(ACC+r), vr(ACC+16+r)))
    for g in range(2):
        e("v_mov_b32 %s, %s" % (vr(64+4*g+1), sr(sTA)))
        e("v_mov_b32 %s, %s" % (vr(64+4*g+3), sr(sTB)))
    e("s_lshl_b32 %s, s2, 2" % sr(sT0))
    e("s_add_u32 %s, %s, %s" % (sr(sT0), sr(sT0), sr(sW)))
    e("s_lshl_b32 %s, %s, 11" % (sr(sT0), sr(sT0)))
    e("s_add_u32 %s, %s, 0x%x" % (sr(sT0), sr(sT0), WS_E0))
    for g in range(2):
        e.vmi(("e0s", g), "buffer_store_dwordx4 %s, v26, %s, %s offen offset:%d%s" % (vr(64+4*g, 4), sr(rWS, 4), sr(sT0), g*1024, SC))

def e0_loads(e, SC=SC):
    e("s_lshl_b32 %s, %s, 5" % (sr(sT0), sr(sB)))
    e("s_add_u32 %s, %s, %s" % (sr(sT0), sr(sT0), sr(sHKV)))
    e("s_lshl_b32 %s, %s, 2" % (sr(sT0), sr(sT0)))
    e("s_add_u32 %s, %s, %s" % (sr(sT0), sr(sT0), sr(sW)))
    e("s_lshl_b32 %s, %s, 11" % (sr(sT0), sr(sT0)))
    e("s_add_u32 %s, %s, 0x%x" % (sr(sT0), sr(sT0), WS_E0))
    e("v_lshlrev_b32 v26, 4, v0")
    for p in range(4):
        for g in range(2):
            e.vmi(("e0l", p, g), "buffer_load_dwordx4 %s, v26, %s, %s offen offset:%d%s" % (vr(96+8*p+4*g, 4), sr(rWS, 4), sr(sT0), g*1024, SC))
        if p < 3: e("s_add_u32 %s, %s, %d" % (sr(sT0), sr(sT0), 8*4*2048))

def tagcheck(e, regs):
    first = True
    for r in regs:
        e("v_xor_b32 v28, %s, %s" % (sr(sTA), vr(r+1)))
        e("v_xor_b32 v29, %s, %s" % (sr(sTB), vr(r+3)))
        if first: e("v_or_b32 v27, v28, v29"); first = False
        else: e("v_or3_b32 v27, v27, v28, v29")
    e("v_cmp_ne_u32 vcc, 0, v27")

def e0_finish(e, cfg):
    e.vmw(("e0l", 3, 1))
    keep = list(e.vm)
    regs = [96+8*p+4*g for p in range(4) for g in range(2)]
    tagcheck(e, regs)
    e.nop(4)
    e("s_cbranch_vccz L_e0_ok")
    e.label("L_e0_retry")
    e("s_add_u32 s94, s94, 1")
    e("s_cmp_ge_u32 s94, 0x40000")
    e("s_cbranch_scc1 L_exitA")
    sv = e.vm; e.vm = []
    e0_loads(e)
    e.vm0()
    tagcheck(e, regs)
    e.nop(4)
    e("s_cbranch_vccnz L_e0_retry")
    e.label("L_e0_ok")
    e.vm = keep
    e("v_lshrrev_b32 v28, 4, v0")
    e("v_and_b32 v29, 15, v0")
    e("v_lshlrev_b32 v28, 11, v28")
    e("v_lshl_add_u32 v28, v29, 4, v28")
    e("s_lshl_b32 %s, %s, 2" % (sr(sT0), sr(sW)))
    e("s_add_u32 %s, %s, %d" % (sr(sT0), sr(sT0), PBASE))
    e("v_add_u32 v28, %s, v28" % sr(sT0))
    for p in range(4):
        for r in range(4):
            off = (p & 1)*8192 + (r >> 1)*1024 + (r & 1)*512 + (p >> 1)*256
            e.lgi(("qs", p, r), "ds_write_b32 v28, %s offset:%d" % (vr(96+8*p+2*r), off))
            if len(e.lg) >= 12: e.lgw(e.lg[3])
    e.lg0()
    e("s_barrier")
    for s in range(16):
        if s == 12: e.lgw(("qf", 3))
        e.lgi(("qf", s), "ds_read_b128 %s, v12 offset:%d" % (ar(64+4*s, 4), s*1024))

def k_addr(e, T):
    e("v_add_u32 v26, %d, v17" % ((16*T) % R))
    e("v_cmp_le_u32 vcc, %d, v26" % R)
    e("v_subrev_u32 v27, %d, v26" % R)
    e.nop(1)
    e("v_cndmask_b32 v26, v26, v27, vcc")
    e("v_lshl_add_u32 v18, v26, 10, v16")
    for j in range(1, 8):
        e("v_xor_b32 %s, %d, v18" % (vr(18+j), j << 5))

def kphase2(e, cfg):
    S0, KF = 32, 96
    nt = cfg.get('nt', "")
    wo_sched = cfg['wo_sched']
    def refill(T, shadow=None):
        wl = wo_sched.get(('K', T), [])
        n = len(wl); done = 0
        for i, u in enumerate(range(16*T+R, 16*T+R+16)):
            k_dma(e, u, nt)
            tsn(e, cfg, 'rf%d_%d' % (T, i))
            if shadow: shadow(i)
            tgt = ((i+1)*n)//16
            while done < tgt:
                ks, s = wl[done]; wo_load(e, ks, s, RAWO+32*ks+4*s, 14); done += 1
            if T == cfg.get('e0T', 0) and i == cfg.get('e0i', 15): e0_loads(e, "" if cfg.get('e0plain') else SC)
    for T in range(2):
        k_addr(e, T)
        e.vmw(("u", 16*T+15))
        tsn(e, cfg, 'u%d' % T)
        for s in range(16):
            if s == 12: e.lgw(("ka", T, 3))
            e.lgi(("ka", T, s), "ds_read_b128 %s, %s offset:%d" % (ar(128+64*T+4*s, 4), vr(18+(s & 7)), (s >> 3)*256))
        e.lg0()
        tsn(e, cfg, 'cp%d' % T)
        if T == 0: wo_vaddr(e, 14, 28, 29)
        refill(T)
        tsn(e, cfg, 't%d' % T)
    e0_finish(e, cfg)
    tsn(e, cfg, 'e0')
    k_addr(e, 2)
    e.lg0()
    def tile_lds(T):
        e.vmw(("u", 16*T+15))
        def rd(s):
            e.lgi(("kr", T, s), "ds_read_b128 %s, %s offset:%d" % (vr(KF+4*(s & 7), 4), vr(18+(s & 7)), (s >> 3)*256))
        for s in range(8): rd(s)
        for s in range(16):
            e.lgw(("kr", T, s))
            cc = "0" if s == 0 else vr(S0+16*T, 16)
            e("v_mfma_f32_32x32x16_bf16 %s, %s, %s, %s" % (vr(S0+16*T, 16), vr(KF+4*(s & 7), 4), ar(64+4*s, 4), cc))
            if s+8 < 16: rd(s+8)
    tile_lds(2)
    deferred = [(T, s) for T in range(2) for s in range(16)]
    def shadow(i):
        for T, s in deferred[2*i:2*i+2]:
            cc = "0" if s == 0 else vr(S0+16*T, 16)
            e("v_mfma_f32_32x32x16_bf16 %s, %s, %s, %s" % (vr(S0+16*T, 16), ar(128+64*T+4*s, 4), ar(64+4*s, 4), cc))
    refill(2, shadow)
    k_addr(e, 3)
    tile_lds(3)
    tsn(e, cfg, 'k3')
    pend = list(range(48+R, 48+R+16))
    wl = list(wo_sched.get(('K', 3), []))
    cnt = [0]
    def pump(n):
        for _ in range(n):
            if pend:
                k_dma(e, pend.pop(0), nt); cnt[0] += 1
                if wl and cnt[0] % 2 == 0:
                    ks, s_ = wl.pop(0); wo_load(e, ks, s_, RAWO+32*ks+4*s_, 14)
        if not pend:
            while wl:
                ks, s_ = wl.pop(0); wo_load(e, ks, s_, RAWO+32*ks+4*s_, 14)
    cfg['pump'] = pump

def mk_vhook(cfg):
    sched = cfg['wo_sched']; t0 = cfg.get('tr0', 0); per = cfg.get('trper', 1)
    def vhook(e, t):
        for ks, s_ in sched.get(('V', t), []):
            wo_load(e, ks, s_, RAWO+32*ks+4*s_, 14)
        for c in range(per):
            idx = (t-t0)*per + c
            if t >= t0 and idx < 32 and not cfg.get('trtail'):
                ks, j = idx >> 3, idx & 7
                if j == 0: e.vmw(("wo", ks, 7))
                transpose8(e, RAWO+32*ks, WOF[ks], cols=[j])
    return vhook
def mk_wo_sched(cfg):
    allw = [(ks, s_) for ks in range(4) for s_ in range(8)]
    plan = cfg.get('woplan', [["K",0,8],["K",1,8],["K",2,8],["K",3,8]])
    sched = {}; i = 0
    for kind, idx, n in plan:
        sched[(kind, idx)] = allw[i:i+n]; i += n
    assert i == 32
    return sched

E1R = (64, 80, 224)
E1S = (240, 244, 248)
def e1_loads(e):
    for k in range(1, 4):
        e("s_add_u32 %s, %s, %d" % (sr(sT0), sr(sSP), k))
        e("s_and_b32 %s, %s, 3" % (sr(sT0), sr(sT0)))
        e("s_lshl_b32 %s, %s, 2" % (sr(sT1), sr(sB)))
        e("s_add_u32 %s, %s, %s" % (sr(sT0), sr(sT0), sr(sT1)))
        e("s_lshl_b32 %s, %s, 3" % (sr(sT0), sr(sT0)))
        e("s_add_u32 %s, %s, %s" % (sr(sT0), sr(sT0), sr(sHKV)))
        e("s_lshl_b32 %s, %s, 2" % (sr(sT0), sr(sT0)))
        e("s_add_u32 %s, %s, %s" % (sr(sT0), sr(sT0), sr(sW)))
        e("s_mul_i32 %s, %s, 5120" % (sr(sT0), sr(sT0)))
        if WS_E1: e("s_add_u32 %s, %s, 0x%x" % (sr(sT0), sr(sT0), WS_E1))
        for r4 in range(4):
            e.vmi(("e1l", k, r4), "buffer_load_dwordx4 %s, v26, %s, %s offen offset:%d%s" % (vr(E1R[k-1]+4*r4, 4), sr(rWS, 4), sr(sT0), r4*1024, SC))
        e("s_add_u32 %s, %s, 4096" % (sr(sT0), sr(sT0)))
        e.vmi(("e1l", k, 4), "buffer_load_dwordx4 %s, v26, %s, %s offen%s" % (vr(E1S[k-1], 4), sr(rWS, 4), sr(sT0), SC))

def e1_check(e):
    regs = [b+i for b in E1R for i in range(16)] + [b+i for b in E1S for i in range(4)]
    e("v_max3_u32 v27, %s, %s, %s" % (vr(regs[0]), vr(regs[1]), vr(regs[2])))
    e("v_max3_u32 v28, %s, %s, %s" % (vr(regs[3]), vr(regs[4]), vr(regs[5])))
    i = 6; tog = 0
    while i < len(regs):
        d = 27+tog
        e("v_max3_u32 %s, %s, %s, %s" % (vr(d), vr(d), vr(regs[i]), vr(regs[i+1]))); i += 2; tog ^= 1
    e("v_max_u32 v27, v27, v28")
    e("v_cmp_eq_u32 vcc, -1, v27")

E1G = ([64+4*g for g in range(6)], [224+4*g for g in range(6)], [2, 6, 10, 14, 88, 92])
def e1d(k, i):
    return E1G[k][i//3] + i % 3
def e1t_base(e):
    for k in range(3):
        e("s_add_u32 %s, %s, %d" % (sr(sT0), sr(sSP), k+1))
        e("s_and_b32 %s, %s, 3" % (sr(sT0), sr(sT0)))
        e("s_lshl_b32 %s, %s, 2" % (sr(sT1), sr(sB)))
        e("s_add_u32 %s, %s, %s" % (sr(sT0), sr(sT0), sr(sT1)))
        e("s_lshl_b32 %s, %s, 3" % (sr(sT0), sr(sT0)))
        e("s_add_u32 %s, %s, %s" % (sr(sT0), sr(sT0), sr(sHKV)))
        e("s_lshl_b32 %s, %s, 2" % (sr(sT0), sr(sT0)))
        e("s_add_u32 %s, %s, %s" % (sr(sT0), sr(sT0), sr(sW)))
        e("s_mul_i32 s%d, %s, 6144" % (95+k, sr(sT0)))
        e("s_add_u32 s%d, s%d, 4096" % (98+k, 95+k))
def e1t_tail(e, cfg):
    G = [224+4*g for g in range(6)]
    D = lambda i: G[i//3] + i % 3
    e("v_lshlrev_b32 v26, 4, v0")
    e("s_lshl_b32 %s, s2, 2" % sr(sT0))
    e("s_add_u32 %s, %s, %s" % (sr(sT0), sr(sT0), sr(sW)))
    e("s_mul_i32 s92, %s, 6144" % sr(sT0))
    e("s_add_u32 s93, s92, 4096")
    e1t_base(e)
    for g in range(6): e("v_mov_b32 %s, %s" % (vr(G[g]+3), sr(sTA)))
    e("v_mov_b32 %s, v31" % vr(D(16)))
    e("v_mov_b32 %s, v30" % vr(D(17)))
    e.nop(4)
    for k in range(16):
        e("v_cvt_pk_bf16_f32 %s, %s, %s" % (vr(D(k)), vr(OACC+2*k), vr(OACC+2*k+1)))
    for g in range(6):
        e.vmi(("e1s", g), "buffer_store_dwordx4 %s, v26, %s, %s offen offset:%d%s" % (vr(G[g], 4), sr(rWS, 4), "s92" if g < 4 else "s93", (g & 3)*1024, SC))
    tsn(e, cfg, 'e1s')
    e("s_mov_b32 s101, 7")
    e("s_mov_b32 %s, 7" % sr(sT2))
    e("v_mov_b32 v22, %d" % (1024 + 63*16 + 12))
    if cfg.get('e1first'): e("s_branch L_e1_full")
    e.label("L_e1_retry")
    e("s_add_u32 s94, s94, 1")
    e("s_cmp_ge_u32 s94, 0x40000")
    e("s_cbranch_scc1 L_exitA")
    PV = (23, 29, 30 + 256)
    PV = (23, 27, 28)
    for k in range(3):
        e("s_bitcmp1_b32 s101, %d" % k)
        e("s_cbranch_scc0 L_e1_ps%d" % k)
        e("buffer_load_dword %s, v22, %s, s%d offen%s" % (vr(PV[k]), sr(rWS, 4), 98+k, SC))
        e.label("L_e1_ps%d" % k)
    e.vm0()
    e("s_mov_b32 %s, 0" % sr(sT2))
    for k in range(3):
        e("v_readfirstlane_b32 %s, %s" % (sr(sT1), vr(PV[k])))
        e("s_cmp_eq_u32 %s, %s" % (sr(sT1), sr(sTA)))
        e("s_cselect_b32 %s, %d, 0" % (sr(sT1), 1 << k))
        e("s_or_b32 %s, %s, %s" % (sr(sT2), sr(sT2), sr(sT1)))
    e("s_and_b32 %s, %s, s101" % (sr(sT2), sr(sT2)))
    e("s_cbranch_scc0 L_e1_retry")
    e.label("L_e1_full")
    for k in range(3):
        e("s_bitcmp1_b32 %s, %d" % (sr(sT2), k))
        e("s_cbranch_scc0 L_e1_sk%d" % k)
        for g in range(6):
            e("buffer_load_dwordx4 %s, v26, %s, s%d offen offset:%d%s" % (vr(E1G[k][g], 4), sr(rWS, 4), (95 if g < 4 else 98)+k, (g & 3)*1024, SC))
        e.label("L_e1_sk%d" % k)
    e.vm0()
    for k in range(3):
        e("s_bitcmp1_b32 %s, %d" % (sr(sT2), k))
        e("s_cbranch_scc0 L_e1_ok%d" % k)
        t = [E1G[k][g]+3 for g in range(6)]
        for g in range(6): e("v_xor_b32 %s, %s, %s" % (vr(t[g]), sr(sTA), vr(t[g])))
        e("v_or3_b32 v27, %s, %s, %s" % (vr(t[0]), vr(t[1]), vr(t[2])))
        e("v_or3_b32 v28, %s, %s, %s" % (vr(t[3]), vr(t[4]), vr(t[5])))
        e("v_or_b32 v27, v27, v28")
        e("v_cmp_ne_u32 vcc, 0, v27")
        e.nop(4)
        e("s_cbranch_vccnz L_e1_ok%d" % k)
        e("s_bitset0_b32 s101, %d" % k)
        e.label("L_e1_ok%d" % k)
    e("s_cmp_lg_u32 s101, 0")
    e("s_cbranch_scc1 L_e1_retry")
    tsn(e, cfg, 'e1')

def tail(e, cfg):
    if cfg.get('e1tag'):
        e1t_tail(e, cfg)
        return tail2(e, cfg, [31] + [e1d(k, 16) for k in range(3)], [30] + [e1d(k, 17) for k in range(3)], e1d)
    tail1(e, cfg)
    tail2(e, cfg, [31] + [b for b in E1S], [30] + [b+1 for b in E1S], lambda j, k: E1R[j]+k)

def tail1(e, cfg):
    PK = 80
    PK = 224; ST = 240
    if cfg.get('trtail'): PK = 64; ST = 80
    e("v_lshlrev_b32 v26, 4, v0")
    e("s_mov_b32 %s, 0xfffffffe" % sr(sM2))
    e.nop(10)
    for k in range(16):
        e("v_cvt_pk_bf16_f32 %s, %s, %s" % (vr(PK+k), vr(OACC+2*k), vr(OACC+2*k+1)))
    for k in range(16):
        e("v_min_u32 %s, %s, %s" % (vr(PK+k), sr(sM2), vr(PK+k)))
    e("v_min_u32 %s, %s, v31" % (vr(ST), sr(sM2)))
    e("v_min_u32 %s, %s, v30" % (vr(ST+1), sr(sM2)))
    e("v_mov_b32 %s, %s" % (vr(ST+2), vr(ST)))
    e("v_mov_b32 %s, %s" % (vr(ST+3), vr(ST+1)))
    for r4 in range(4):
        e.vmi(("e1s", r4), "buffer_store_dwordx4 %s, v26, %s, s92 offen offset:%d%s" % (vr(PK+4*r4, 4), sr(rWS, 4), r4*1024, SC))
    e("s_add_u32 %s, s92, 4096" % sr(sT0))
    e.vmi(("e1s", 4), "buffer_store_dwordx4 %s, v26, %s, %s offen%s" % (vr(ST, 4), sr(rWS, 4), sr(sT0), SC))
    tsn(e, cfg, 'e1s')
    if cfg.get('trtail'):
        for ks in range(4):
            e.vmw(("wo", ks, 7))
            transpose8(e, RAWO+32*ks, WOF[ks])
    e("s_nop 1")
    e.label("L_e1_retry")
    e("s_add_u32 s94, s94, 1")
    e("s_cmp_ge_u32 s94, 0x40000")
    e("s_cbranch_scc1 L_exitA")
    e1_loads(e)
    e.vm0()
    e1_check(e)
    e.nop(4)
    e("s_cbranch_vccnz L_e1_retry")
    tsn(e, cfg, 'e1')

def tail2(e, cfg, m, l, srcf):
    e("v_max3_f32 v28, %s, %s, %s" % (vr(m[0]), vr(m[1]), vr(m[2])))
    e("v_max_f32 v28, v28, %s" % vr(m[3]))
    W = [18, 19, 20, 21]
    for j in range(4): e("v_sub_f32 %s, %s, v28" % (vr(W[j]), vr(m[j])))
    for j in range(4): e("v_exp_f32 %s, %s" % (vr(W[j]), vr(W[j])))
    e.nop(1)
    e("v_mul_f32 v28, %s, %s" % (vr(W[0]), vr(l[0])))
    for j in range(1, 4): e("v_fmac_f32 v28, %s, %s" % (vr(W[j]), vr(l[j])))
    e("v_rcp_f32 v28, v28")
    e.nop(1)
    for j in range(4): e("v_mul_f32 %s, %s, v28" % (vr(W[j]), vr(W[j])))
    e("s_mov_b32 %s, 0xffff0000" % sr(sT2))
    for k in range(32): e("v_mul_f32 %s, %s, %s" % (vr(OACC+k), vr(OACC+k), vr(W[0])))
    for j in range(1, 4):
        for k in range(16):
            src = vr(srcf(j-1, k))
            d = 28 + 2*(k & 0)
            e("v_lshlrev_b32 v28, 16, %s" % src)
            e("v_and_b32 v29, %s, %s" % (sr(sT2), src))
            e("v_fmac_f32 %s, v28, %s" % (vr(OACC+2*k), vr(W[j])))
            e("v_fmac_f32 %s, v29, %s" % (vr(OACC+2*k+1), vr(W[j])))
    OF = 64
    for k in range(16):
        e("v_cvt_pk_bf16_f32 %s, %s, %s" % (vr(OF+k), vr(OACC+2*k), vr(OACC+2*k+1)))
    e.nop(2)
    ACC = 32
    for ks in range(4):
        for j in range(8):
            c = "0" if ks == 0 else vr(ACC+4*j, 4)
            e("v_mfma_f32_16x16x32_bf16 %s, %s, %s, %s" % (vr(ACC+4*j, 4), vr(WOF[ks]+4*j, 4), vr(OF+4*ks, 4), c))
    e("v_add_u32 v27, %s, v26" % sr(sRING))
    e("v_bfe_u32 v28, v0, 1, 3")
    e("v_lshlrev_b32 v28, 14, v28")
    e("v_lshrrev_b32 v29, 4, v0")
    e("v_lshl_add_u32 v28, v29, 5, v28")
    e("v_and_b32 v29, 1, v0")
    e("v_lshl_add_u32 v25, v29, 4, v28")
    e.nop(2)
    for j in range(8):
        e.lgi(("opw", j), "ds_write_b128 v27, %s offset:%d" % (vr(ACC+4*j, 4), j*1024))
    e.lg0()
    e("s_barrier")
    e("s_lshl_b32 %s, %s, 11" % (sr(sT0), sr(sW)))
    e("v_add_u32 v27, %s, v26" % sr(sT0))
    T = ACC
    for jj in range(2):
        for w in range(3):
            e.lgi(("opr", jj, w), "ds_read_b128 %s, v27 offset:%d" % (vr(T+16*jj+4*w, 4), jj*1024 + w*RING))
    e("v_add_u32 v28, %d, v27" % (3*RING))
    for jj in range(2):
        e.lgi(("opr3", jj), "ds_read_b128 %s, v28 offset:%d" % (vr(T+16*jj+12, 4), jj*1024))
    e("s_lshl_b32 %s, %s, 2" % (sr(sT0), sr(sB)))
    e("s_add_u32 %s, %s, %s" % (sr(sT0), sr(sT0), sr(sSP)))
    e("s_lshl_b32 %s, %s, 17" % (sr(sT0), sr(sT0)))
    e("s_add_u32 %s, %s, 0x%x" % (sr(sT0), sr(sT0), WS_E2))
    e("s_lshl_b32 %s, %s, 12" % (sr(sT1), sr(sW)))
    e("s_add_u32 %s, %s, %s" % (sr(sT0), sr(sT0), sr(sT1)))
    e("s_lshl_b32 %s, %s, 7" % (sr(sT1), sr(sHKV)))
    e("s_add_u32 %s, %s, %s" % (sr(sT1), sr(sT1), sr(sT0)))
    e("s_lshl_b32 %s, %s, 14" % (sr(sT2), sr(sHKV)))
    e("s_add_u32 s93, %s, %s" % (sr(sT2), sr(sT0)))
    e.lg0()
    G = 64
    for jj in range(2):
        b0 = T+16*jj
        for k in range(4):
            e("v_add_f32 %s, %s, %s" % (vr(b0+k), vr(b0+k), vr(b0+4+k)))
            e("v_add_f32 %s, %s, %s" % (vr(b0+8+k), vr(b0+8+k), vr(b0+12+k)))
        for r in range(4):
            g = G + 4*(2*jj+(r >> 1)) + 2*(r & 1)
            e("v_add_f32 %s, %s, %s" % (vr(g), vr(b0+r), vr(b0+8+r)))
    for t in range(4):
        e("v_mov_b32 %s, %s" % (vr(G+4*t+1), sr(sTA)))
        e("v_mov_b32 %s, %s" % (vr(G+4*t+3), sr(sTB)))
    for t in range(4):
        e.vmi(("e2s", t), "buffer_store_dwordx4 %s, v25, %s, %s offen offset:%d%s" % (vr(G+4*t, 4), sr(rWS, 4), sr(sT1), t*1024, SC))
    tsn(e, cfg, 'e2s')
    e("v_and_b32 v28, 1, v0")
    e("s_lshl_b32 %s, %s, 1" % (sr(sT2), sr(sHKV)))
    e("v_add_u32 v28, %s, v28" % sr(sT2))
    e("v_mul_u32_u24 v28, 896, v28")
    e("v_bfe_u32 v29, v0, 1, 2")
    e("v_lshl_add_u32 v28, v29, 6, v28")
    e("v_bfe_u32 v30, v0, 5, 1")
    e("v_bfe_u32 v31, v0, 4, 1")
    e("v_lshl_add_u32 v30, v30, 1, v31")
    e("v_lshl_add_u32 v28, v30, 4, v28")
    e("s_mul_i32 %s, %s, 14336" % (sr(sT2), sr(sB)))
    e("s_lshl_b32 %s, %s, 8" % (sr(sT3), sr(sSP)))
    e("s_add_u32 %s, %s, %s" % (sr(sT2), sr(sT2), sr(sT3)))
    e("s_lshl_b32 %s, %s, 2" % (sr(sT3), sr(sW)))
    e("s_add_u32 %s, %s, %s" % (sr(sT2), sr(sT2), sr(sT3)))
    e("v_add_u32 v24, %s, v28" % sr(sT2))
    e("v_lshl_add_u32 v29, v29, 2, v30")
    e("v_bfe_u32 v31, v0, 3, 1")
    e("v_lshl_add_u32 v29, v31, 4, v29")
    e("v_mov_b32 v31, 0x40000000")
    e("s_cmp_eq_u32 %s, 3" % sr(sSP))
    e("s_cselect_b32 %s, 8, 16" % sr(sT3))
    e("v_cmp_le_u32 vcc, %s, v29" % sr(sT3))
    e.nop(2)
    e("v_cndmask_b32 v24, v24, v31, vcc")
    F = 80
    e.label("L_e2_retry")
    e("s_add_u32 s94, s94, 1")
    e("s_cmp_ge_u32 s94, 0x40000")
    e("s_cbranch_scc1 L_exitA")
    for t in range(4):
        e.vmi(("e2l", t), "buffer_load_dwordx4 %s, v26, %s, s93 offen offset:%d%s" % (vr(F+4*t, 4), sr(rWS, 4), t*1024, SC))
    if cfg.get('e2mask', 1): e("s_mov_b64 exec, -1")
    e.vm0()
    tagcheck(e, [F+4*t for t in range(4)])
    e.nop(4)
    if cfg.get('e2mask', 1):
        e("s_and_b64 exec, vcc, vcc")
        e("s_cbranch_scc1 L_e2_retry")
        e("s_mov_b64 exec, -1")
    else:
        e("s_cbranch_vccnz L_e2_retry")
    tsn(e, cfg, 'e2')
    V = lambda jj, r: F + 4*(2*jj+(r >> 1)) + 2*(r & 1)
    for jj in range(2):
        for r in range(2):
            e("v_permlane32_swap_b32 %s, %s" % (vr(V(jj, r)), vr(V(jj, r+2))))
    e.nop(2)
    for jj in range(2):
        for r in range(2):
            e("v_add_f32 %s, %s, %s" % (vr(V(jj, r)), vr(V(jj, r)), vr(V(jj, r+2))))
    e.nop(2)
    for jj in range(2):
        e("v_permlane16_swap_b32 %s, %s" % (vr(V(jj, 0)), vr(V(jj, 1))))
    e.nop(2)
    for jj in range(2):
        e("v_add_f32 %s, %s, %s" % (vr(V(jj, 0)), vr(V(jj, 0)), vr(V(jj, 1))))
    e.nop(2)
    for jj in range(2):
        e("v_add_f32_dpp %s, %s, %s row_ror:8 row_mask:0xf bank_mask:0xf" % (vr(V(jj, 1)), vr(V(jj, 0)), vr(V(jj, 0))))
    e.nop(2)
    e("v_cvt_pk_bf16_f32 v30, %s, %s" % (vr(V(0, 1)), vr(V(1, 1))))
    e("buffer_store_dword v30, v24, %s, 0 offen" % sr(rOUT, 4))
    e("s_and_b32 %s, s2, 31" % sr(sT0))
    e("s_or_b32 %s, %s, %s" % (sr(sT0), sr(sT0), sr(sW)))
    e("s_cmp_lg_u32 %s, 0" % sr(sT0))
    e("s_cbranch_scc1 L_nobump")
    e("v_mov_b32 v30, %s" % sr(sTA))
    e("v_mov_b32 v31, 0")
    e("s_lshl_b32 %s, %s, 8" % (sr(sT0), sr(sB)))
    e("s_add_u32 %s, %s, 0x%x" % (sr(sT0), sr(sT0), WS_EP))
    e("s_mov_b64 exec, 1")
    e("buffer_store_dword v30, v31, %s, %s offen%s" % (sr(rWS, 4), sr(sT0), SC))
    e.label("L_nobump")

def build_v2(cfg):
    name = "standalone__gqa_block_cached__sampling_kernel"
    e = Em(); c = dict(cfg); c['exit'] = "L_exitA"; c['uid'] = 0
    tsn(e, c, 'start')
    common_prologue(e, 256, c)
    e("s_mov_b32 s94, 0")
    attn_setup(e, c)
    e("v_lshrrev_b32 v28, 4, v0")
    e("v_and_b32 v29, 15, v0")
    e("v_lshlrev_b32 v30, 16, v28")
    e("v_lshl_add_u32 v30, v29, 4, v30")
    e("s_lshl_b32 %s, %s, 18" % (sr(sT0), sr(sW)))
    e("v_add_u32 v14, %s, v30" % sr(sT0))
    e("s_lshl_b32 %s, %s, 8" % (sr(sT3), sr(sB)))
    e("s_add_u32 %s, %s, 0x%x" % (sr(sT3), sr(sT3), WS_EP))
    e("s_waitcnt lgkmcnt(0)")
    e("s_load_dword %s, %s, %s" % (sr(sM2), sr(sWS, 2), sr(sT3)))
    attn_srds(e)
    e("s_lshl_b32 %s, %s, 10" % (sr(sT0), sr(sHKV)))
    e("s_lshl_b32 %s, %s, 8" % (sr(sT1), sr(sSP)))
    e("s_add_u32 %s, %s, %s" % (sr(sT0), sr(sT0), sr(sT1)))
    e("s_add_u32 %s, %s, %s" % (sr(rWQ), sr(sWQ), sr(sT0)))
    e("s_addc_u32 %s, %s, 0" % (sr(rWQ+1), sr(sWQ+1)))
    e("s_sub_u32 %s, %d, %s" % (sr(rWQ+2), 448*8192, sr(sT0)))
    wo_srd(e)
    tsn(e, c, 'srd')
    c['wo_sched'] = mk_wo_sched(c)
    nt = c.get('nt', " nt")
    c['nt'] = nt
    nu = [0]
    def kd(n):
        for _ in range(n):
            if nu[0] < R:
                k_dma(e, nu[0], nt); nu[0] += 1
                if nu[0] % 4 == 0: tsn(e, c, 'ik%d' % nu[0])
    q_issue(e, c, kd)
    tsn(e, c, 'qiss')
    e("s_waitcnt lgkmcnt(0)")
    e("s_add_u32 %s, %s, 0x%x" % (sr(sTA), sr(sM2), C1))
    e("s_add_u32 %s, %s, 0x%x" % (sr(sTB), sr(sTA), C2))
    q_compute(e, c, kd)
    if c.get('wopf', 0) == 1: e.vmi(("pf", 1), "global_load_dword v31, v22, %s" % sr(sWO, 2))
    kd(R)
    tsn(e, c, 'qdone')
    kphase2(e, c)
    tsn(e, c, 'kend')
    softmax(e, c)
    c['pump'](16)
    tsn(e, c, 'smend')
    c['vhook'] = mk_vhook(c)
    vphase(e, c)
    tsn(e, c, 'vend')
    tail(e, c)
    tsn(e, c, 'end')
    e.vm0()
    if c.get('tsn') and c.get('dbg'):
        n = len(c['tsn'])
        e("s_waitcnt lgkmcnt(0)")
        e("s_mov_b64 exec, 1")
        e("v_mov_b32 v1, 0")
        for i in range(n):
            e("v_mov_b32 v2, %s" % sr(sTS+2*i))
            e("global_atomic_add v1, v2, s[16:17] offset:%d" % (4*i))
        e("s_not_b32 s20, %s" % sr(sTS))
        e("v_mov_b32 v2, s20")
        e("global_atomic_umax v1, v2, s[16:17] offset:56")
        e("v_mov_b32 v2, %s" % sr(sTS+2*(n-1)))
        e("global_atomic_umax v1, v2, s[16:17] offset:60")
        e.vm0()
    elif c.get('tsn'):
        c['ts'] = 1
        ts_store(e, c, len(c['tsn']))
    e.label("L_exitA")
    e("s_endpgm")
    txt = HDR + "; @launch grid=(256,1,1) block=(256,1,1) lds=%d\n" % LDS_A
    txt += HEAD + kernel_text(name, e.text())
    txt += '.section .rodata,"a"\n.p2align 6\n' + kd_text(name, 512, 256)
    return txt

if __name__ == "__main__":
    import json
    cfg = json.loads(sys.argv[2]) if len(sys.argv) > 2 else {}
    open(sys.argv[1], "w").write(build_v2(cfg))
```

```python
from gen2 import *

WS_E1 = 0
WS_E0 = 6 << 20
WS_E2 = 10 << 20
WS_EP = 16 << 20
C1, C2 = 0x9E3779B9, 0x7F4A7C15
sTA, sTB, sM2 = 58, 59, 63
SC = " sc1"
def tsn(e, cfg, name):
    L = cfg.get('tsn')
    if L and name in L:
        e("s_memrealtime %s" % sr(sTS + 2*L.index(name), 2))

def q_issue(e, cfg, kd):
    RAW = 128
    e("s_lshl_b32 %s, s2, 2" % sr(sT0))
    e("s_add_u32 %s, %s, %s" % (sr(sT0), sr(sT0), sr(sW)))
    e("s_mul_i32 %s, %s, 5120" % (sr(sT0), sr(sT0)))
    if WS_E1: e("s_add_u32 %s, %s, 0x%x" % (sr(sT0), sr(sT0), WS_E1))
    e("s_mov_b32 s92, %s" % sr(sT0))
    for k in range(4): e("v_mov_b32 %s, -1" % vr(96+k))
    e("v_lshlrev_b32 v26, 4, v0")
    def clears():
        for k in range(5):
            e("s_add_u32 %s, s92, %d" % (sr(sT0), k*1024))
            e.vmi(("clr", k), "buffer_store_dwordx4 v[96:99], v26, %s, %s offen%s" % (sr(rWS, 4), sr(sT0), SC))
    cp = cfg.get('clrpos', 9)
    if cfg.get('e1tag'): cp = -1
    if cp == 0: clears()
    if cfg.get('pref', 1):
        e("s_lshl_b32 %s, %s, 2" % (sr(sT0), sr(sB)))
        e("s_add_u32 %s, %s, %s" % (sr(sT0), sr(sT0), sr(sSP)))
        e("s_lshl_b32 %s, %s, 2" % (sr(sT0), sr(sT0)))
        e("s_add_u32 %s, %s, %s" % (sr(sT0), sr(sT0), sr(sW)))
        e("s_mul_i32 %s, %s, 28" % (sr(sT0), sr(sT0)))
        e("v_min_u32 v28, 27, v0")
        e("v_add_u32 v28, %s, v28" % sr(sT0))
        e("v_lshrrev_b32 v29, 3, v28")
        e("v_lshlrev_b32 v29, 13, v29")
        e("v_and_b32 v30, 7, v28")
        e("v_lshl_add_u32 v29, v30, 7, v29")
        e("s_lshl_b32 %s, %s, 10" % (sr(sT1), sr(sHKV)))
        e("v_add_u32 v29, %s, v29" % sr(sT1))
        e("v_lshlrev_b32 v28, 7, v28")
        e("s_mul_i32 %s, %s, %d" % (sr(sT1), sr(sHKV), 512*896))
        e("v_add_u32 v28, %s, v28" % sr(sT1))
        e.vmi(("pf", 0), "global_load_dword v30, v29, %s" % sr(sWQ, 2))
        if cfg.get('wopf', 0) == 0: e.vmi(("pf", 1), "global_load_dword v31, v28, %s" % sr(sWO, 2))
        else: e("v_mov_b32 v22, v28")
    if cp == 1: clears()
    if cfg.get('pf2'):
        e("v_mov_b32 v27, 0")
        e("s_lshl_b32 %s, %s, 16" % (sr(sT0), sr(sW)))
        e.vmi(("pf", 2), "buffer_load_dword v24, v27, %s, %s offen" % (sr(rV, 4), sr(sT0)))
        if cfg['pf2'] > 1:
            e("s_lshl_b32 %s, s2, 13" % sr(sT0))
            e("s_add_u32 %s, %s, 0x%x" % (sr(sT0), sr(sT0), WS_E0))
            e.vmi(("pf", 3), "buffer_load_dword v25, v27, %s, %s offen" % (sr(rWS, 4), sr(sT0)))
            e("s_lshl_b32 %s, s2, 14" % sr(sT0))
            e("s_add_u32 %s, %s, 0x%x" % (sr(sT0), sr(sT0), WS_E2))
            e.vmi(("pf", 4), "buffer_load_dword v23, v27, %s, %s offen" % (sr(rWS, 4), sr(sT0)))
            e.vmi(("pf", 5), "buffer_load_dword v22, v27, %s, 0 offen" % (sr(rOUT, 4)))
    kd(cfg.get('k0', 8))
    for t in range(4):
        e("s_lshl_b32 %s, %s, 6" % (sr(sT0), sr(sW)))
        if t: e("s_add_u32 %s, %s, %d" % (sr(sT0), sr(sT0), t*256))
        if t == 3:
            e("s_cmp_ge_u32 %s, 2" % sr(sW))
            e("s_cselect_b32 %s, 0x40000000, %s" % (sr(sT0), sr(sT0)))
        e.vmi(("x", t), "buffer_load_dwordx4 %s, v15, %s, %s offen" % (ar(4*t, 4), sr(rX, 4), sr(sT0)))
    tsn(e, cfg, 'ix')
    for t in range(4):
        for r in range(8):
            e("s_mov_b32 %s, %d" % (sr(sOFF), (128*t+r)*8192))
            e.vmi(("wq", t, r), "buffer_load_dwordx4 %s, v14, %s, %s offen" % (vr(RAW+32*t+4*r, 4), sr(rWQ, 4), sr(sOFF)))
            m = cfg.get('kmix', 0)
            if m and (8*t+r) % m == m-1: kd(1)
        tsn(e, cfg, 'iq%d' % t)
    if cp == 9: clears()

def q_compute(e, cfg, kd):
    RAW, ACC, TB = 128, 32, 64
    def perms(raw, c):
        buf = TB + 8*(c & 1)
        for jj in range(2):
            j = 2*c+jj
            for p in range(4):
                sel = sPHI if (j & 1) else sPLO
                e("v_perm_b32 %s, %s, %s, %s" % (vr(buf+4*jj+p), vr(raw+4*(2*p+1)+c), vr(raw+4*(2*p)+c), sr(sel)))
    def mf(t, c):
        buf = TB + 8*(c & 1)
        for jj in range(2):
            j = 2*c+jj
            cc = "0" if t == 0 else vr(ACC+4*j, 4)
            e("v_mfma_f32_16x16x32_bf16 %s, %s, %s, %s" % (vr(ACC+4*j, 4), vr(buf+4*jj, 4), ar(4*t, 4), cc))
    left = cfg.get('kmid', 0)
    for t in range(4):
        raw = RAW+32*t
        e.vmw(("wq", t, 7))
        tsn(e, cfg, 'wq%d' % t)
        perms(raw, 0); kd(1); perms(raw, 1); mf(t, 0); kd(1); perms(raw, 2); mf(t, 1); kd(1); perms(raw, 3); mf(t, 2)
        kd(1)
        mf(t, 3)
    e("s_lshl_b32 %s, %s, 13" % (sr(sT0), sr(sW)))
    e("s_add_u32 %s, %s, %d" % (sr(sT0), sr(sT0), PBASE))
    e("v_add_u32 v27, %s, v26" % sr(sT0))
    e.nop(6)
    for j in range(8):
        e.lgi(("qw", j), "ds_write_b128 v27, %s offset:%d" % (vr(ACC+4*j, 4), j*1024))
    kd(2)
    tsn(e, cfg, 'qmf')
    if not cfg.get('e1tag'): e.vmw(("clr", 4))
    tsn(e, cfg, 'clr')
    e.lg0()
    e("s_barrier")
    tsn(e, cfg, 'qbar')
    e("s_lshl_b32 %s, %s, 11" % (sr(sT0), sr(sW)))
    e("s_add_u32 %s, %s, %d" % (sr(sT0), sr(sT0), PBASE))
    e("v_add_u32 v27, %s, v26" % sr(sT0))
    for jj in range(2):
        for w in range(4):
            e.lgi(("qr", jj, w), "ds_read_b128 %s, v27 offset:%d" % (vr(ACC+16*jj+4*w, 4), w*8192+jj*1024))
    kd(2)
    for jj in range(2):
        e.lgw(("qr", jj, 3))
        b0 = ACC+16*jj
        for k in range(4):
            e("v_add_f32 %s, %s, %s" % (vr(b0+k), vr(b0+k), vr(b0+4+k)))
            e("v_add_f32 %s, %s, %s" % (vr(b0+8+k), vr(b0+8+k), vr(b0+12+k)))
        for k in range(4):
            e("v_add_f32 %s, %s, %s" % (vr(b0+k), vr(b0+k), vr(b0+8+k)))
    e("s_barrier")
    for r in range(4):
        e("v_cvt_pk_bf16_f32 %s, %s, %s" % (vr(64+2*r), vr(ACC+r), vr(ACC+16+r)))
    for g in range(2):
        e("v_mov_b32 %s, %s" % (vr(64+4*g+1), sr(sTA)))
        e("v_mov_b32 %s, %s" % (vr(64+4*g+3), sr(sTB)))
    e("s_lshl_b32 %s, s2, 2" % sr(sT0))
    e("s_add_u32 %s, %s, %s" % (sr(sT0), sr(sT0), sr(sW)))
    e("s_lshl_b32 %s, %s, 11" % (sr(sT0), sr(sT0)))
    e("s_add_u32 %s, %s, 0x%x" % (sr(sT0), sr(sT0), WS_E0))
    for g in range(2):
        e.vmi(("e0s", g), "buffer_store_dwordx4 %s, v26, %s, %s offen offset:%d%s" % (vr(64+4*g, 4), sr(rWS, 4), sr(sT0), g*1024, SC))

def e0_loads(e, SC=SC):
    e("s_lshl_b32 %s, %s, 5" % (sr(sT0), sr(sB)))
    e("s_add_u32 %s, %s, %s" % (sr(sT0), sr(sT0), sr(sHKV)))
    e("s_lshl_b32 %s, %s, 2" % (sr(sT0), sr(sT0)))
    e("s_add_u32 %s, %s, %s" % (sr(sT0), sr(sT0), sr(sW)))
    e("s_lshl_b32 %s, %s, 11" % (sr(sT0), sr(sT0)))
    e("s_add_u32 %s, %s, 0x%x" % (sr(sT0), sr(sT0), WS_E0))
    e("v_lshlrev_b32 v26, 4, v0")
    for p in range(4):
        for g in range(2):
            e.vmi(("e0l", p, g), "buffer_load_dwordx4 %s, v26, %s, %s offen offset:%d%s" % (vr(96+8*p+4*g, 4), sr(rWS, 4), sr(sT0), g*1024, SC))
        if p < 3: e("s_add_u32 %s, %s, %d" % (sr(sT0), sr(sT0), 8*4*2048))

def tagcheck(e, regs):
    first = True
    for r in regs:
        e("v_xor_b32 v28, %s, %s" % (sr(sTA), vr(r+1)))
        e("v_xor_b32 v29, %s, %s" % (sr(sTB), vr(r+3)))
        if first: e("v_or_b32 v27, v28, v29"); first = False
        else: e("v_or3_b32 v27, v27, v28, v29")
    e("v_cmp_ne_u32 vcc, 0, v27")

def e0_finish(e, cfg):
    e.vmw(("e0l", 3, 1))
    keep = list(e.vm)
    regs = [96+8*p+4*g for p in range(4) for g in range(2)]
    tagcheck(e, regs)
    e.nop(4)
    e("s_cbranch_vccz L_e0_ok")
    e.label("L_e0_retry")
    e("s_add_u32 s94, s94, 1")
    e("s_cmp_ge_u32 s94, 0x40000")
    e("s_cbranch_scc1 L_exitA")
    sv = e.vm; e.vm = []
    e0_loads(e)
    e.vm0()
    tagcheck(e, regs)
    e.nop(4)
    e("s_cbranch_vccnz L_e0_retry")
    e.label("L_e0_ok")
    e.vm = keep
    e("v_lshrrev_b32 v28, 4, v0")
    e("v_and_b32 v29, 15, v0")
    e("v_lshlrev_b32 v28, 11, v28")
    e("v_lshl_add_u32 v28, v29, 4, v28")
    e("s_lshl_b32 %s, %s, 2" % (sr(sT0), sr(sW)))
    e("s_add_u32 %s, %s, %d" % (sr(sT0), sr(sT0), PBASE))
    e("v_add_u32 v28, %s, v28" % sr(sT0))
    for p in range(4):
        for r in range(4):
            off = (p & 1)*8192 + (r >> 1)*1024 + (r & 1)*512 + (p >> 1)*256
            e.lgi(("qs", p, r), "ds_write_b32 v28, %s offset:%d" % (vr(96+8*p+2*r), off))
            if len(e.lg) >= 12: e.lgw(e.lg[3])
    e.lg0()
    e("s_barrier")
    for s in range(16):
        if s == 12: e.lgw(("qf", 3))
        e.lgi(("qf", s), "ds_read_b128 %s, v12 offset:%d" % (ar(64+4*s, 4), s*1024))

def k_addr(e, T):
    e("v_add_u32 v26, %d, v17" % ((16*T) % R))
    e("v_cmp_le_u32 vcc, %d, v26" % R)
    e("v_subrev_u32 v27, %d, v26" % R)
    e.nop(1)
    e("v_cndmask_b32 v26, v26, v27, vcc")
    e("v_lshl_add_u32 v18, v26, 10, v16")
    for j in range(1, 8):
        e("v_xor_b32 %s, %d, v18" % (vr(18+j), j << 5))

def kphase2(e, cfg):
    S0, KF = 32, 96
    nt = cfg.get('nt', "")
    wo_sched = cfg['wo_sched']
    def refill(T, shadow=None):
        wl = wo_sched.get(('K', T), [])
        n = len(wl); done = 0
        for i, u in enumerate(range(16*T+R, 16*T+R+16)):
            k_dma(e, u, nt)
            tsn(e, cfg, 'rf%d_%d' % (T, i))
            if shadow: shadow(i)
            tgt = ((i+1)*n)//16
            while done < tgt:
                ks, s = wl[done]; wo_load(e, ks, s, RAWO+32*ks+4*s, 14); done += 1
            if T == cfg.get('e0T', 0) and i == cfg.get('e0i', 15): e0_loads(e, "" if cfg.get('e0plain') else SC)
    for T in range(2):
        k_addr(e, T)
        e.vmw(("u", 16*T+15))
        tsn(e, cfg, 'u%d' % T)
        for s in range(16):
            if s == 12: e.lgw(("ka", T, 3))
            e.lgi(("ka", T, s), "ds_read_b128 %s, %s offset:%d" % (ar(128+64*T+4*s, 4), vr(18+(s & 7)), (s >> 3)*256))
        e.lg0()
        tsn(e, cfg, 'cp%d' % T)
        if T == 0: wo_vaddr(e, 14, 28, 29)
        refill(T)
        tsn(e, cfg, 't%d' % T)
    e0_finish(e, cfg)
    tsn(e, cfg, 'e0')
    k_addr(e, 2)
    e.lg0()
    def tile_lds(T):
        e.vmw(("u", 16*T+15))
        def rd(s):
            e.lgi(("kr", T, s), "ds_read_b128 %s, %s offset:%d" % (vr(KF+4*(s & 7), 4), vr(18+(s & 7)), (s >> 3)*256))
        for s in range(8): rd(s)
        for s in range(16):
            e.lgw(("kr", T, s))
            cc = "0" if s == 0 else vr(S0+16*T, 16)
            e("v_mfma_f32_32x32x16_bf16 %s, %s, %s, %s" % (vr(S0+16*T, 16), vr(KF+4*(s & 7), 4), ar(64+4*s, 4), cc))
            if s+8 < 16: rd(s+8)
    tile_lds(2)
    deferred = [(T, s) for T in range(2) for s in range(16)]
    def shadow(i):
        for T, s in deferred[2*i:2*i+2]:
            cc = "0" if s == 0 else vr(S0+16*T, 16)
            e("v_mfma_f32_32x32x16_bf16 %s, %s, %s, %s" % (vr(S0+16*T, 16), ar(128+64*T+4*s, 4), ar(64+4*s, 4), cc))
    refill(2, shadow)
    k_addr(e, 3)
    tile_lds(3)
    tsn(e, cfg, 'k3')
    pend = list(range(48+R, 48+R+16))
    wl = list(wo_sched.get(('K', 3), []))
    cnt = [0]
    def pump(n):
        for _ in range(n):
            if pend:
                k_dma(e, pend.pop(0), nt); cnt[0] += 1
                if wl and cnt[0] % 2 == 0:
                    ks, s_ = wl.pop(0); wo_load(e, ks, s_, RAWO+32*ks+4*s_, 14)
        if not pend:
            while wl:
                ks, s_ = wl.pop(0); wo_load(e, ks, s_, RAWO+32*ks+4*s_, 14)
    cfg['pump'] = pump

def mk_vhook(cfg):
    sched = cfg['wo_sched']; t0 = cfg.get('tr0', 0); per = cfg.get('trper', 1)
    def vhook(e, t):
        for ks, s_ in sched.get(('V', t), []):
            wo_load(e, ks, s_, RAWO+32*ks+4*s_, 14)
        for c in range(per):
            idx = (t-t0)*per + c
            if t >= t0 and idx < 32 and not cfg.get('trtail'):
                ks, j = idx >> 3, idx & 7
                if j == 0: e.vmw(("wo", ks, 7))
                transpose8(e, RAWO+32*ks, WOF[ks], cols=[j])
    return vhook
def mk_wo_sched(cfg):
    allw = [(ks, s_) for ks in range(4) for s_ in range(8)]
    plan = cfg.get('woplan', [["K",0,8],["K",1,8],["K",2,8],["K",3,8]])
    sched = {}; i = 0
    for kind, idx, n in plan:
        sched[(kind, idx)] = allw[i:i+n]; i += n
    assert i == 32
    return sched

E1R = (64, 80, 224)
E1S = (240, 244, 248)
def e1_loads(e):
    for k in range(1, 4):
        e("s_add_u32 %s, %s, %d" % (sr(sT0), sr(sSP), k))
        e("s_and_b32 %s, %s, 3" % (sr(sT0), sr(sT0)))
        e("s_lshl_b32 %s, %s, 2" % (sr(sT1), sr(sB)))
        e("s_add_u32 %s, %s, %s" % (sr(sT0), sr(sT0), sr(sT1)))
        e("s_lshl_b32 %s, %s, 3" % (sr(sT0), sr(sT0)))
        e("s_add_u32 %s, %s, %s" % (sr(sT0), sr(sT0), sr(sHKV)))
        e("s_lshl_b32 %s, %s, 2" % (sr(sT0), sr(sT0)))
        e("s_add_u32 %s, %s, %s" % (sr(sT0), sr(sT0), sr(sW)))
        e("s_mul_i32 %s, %s, 5120" % (sr(sT0), sr(sT0)))
        if WS_E1: e("s_add_u32 %s, %s, 0x%x" % (sr(sT0), sr(sT0), WS_E1))
        for r4 in range(4):
            e.vmi(("e1l", k, r4), "buffer_load_dwordx4 %s, v26, %s, %s offen offset:%d%s" % (vr(E1R[k-1]+4*r4, 4), sr(rWS, 4), sr(sT0), r4*1024, SC))
        e("s_add_u32 %s, %s, 4096" % (sr(sT0), sr(sT0)))
        e.vmi(("e1l", k, 4), "buffer_load_dwordx4 %s, v26, %s, %s offen%s" % (vr(E1S[k-1], 4), sr(rWS, 4), sr(sT0), SC))

def e1_check(e):
    regs = [b+i for b in E1R for i in range(16)] + [b+i for b in E1S for i in range(4)]
    e("v_max3_u32 v27, %s, %s, %s" % (vr(regs[0]), vr(regs[1]), vr(regs[2])))
    e("v_max3_u32 v28, %s, %s, %s" % (vr(regs[3]), vr(regs[4]), vr(regs[5])))
    i = 6; tog = 0
    while i < len(regs):
        d = 27+tog
        e("v_max3_u32 %s, %s, %s, %s" % (vr(d), vr(d), vr(regs[i]), vr(regs[i+1]))); i += 2; tog ^= 1
    e("v_max_u32 v27, v27, v28")
    e("v_cmp_eq_u32 vcc, -1, v27")

E1G = ([64+4*g for g in range(6)], [224+4*g for g in range(6)], [2, 6, 10, 14, 88, 92])
def e1d(k, i):
    return E1G[k][i//3] + i % 3
def e1t_base(e):
    for k in range(3):
        e("s_add_u32 %s, %s, %d" % (sr(sT0), sr(sSP), k+1))
        e("s_and_b32 %s, %s, 3" % (sr(sT0), sr(sT0)))
        e("s_lshl_b32 %s, %s, 2" % (sr(sT1), sr(sB)))
        e("s_add_u32 %s, %s, %s" % (sr(sT0), sr(sT0), sr(sT1)))
        e("s_lshl_b32 %s, %s, 3" % (sr(sT0), sr(sT0)))
        e("s_add_u32 %s, %s, %s" % (sr(sT0), sr(sT0), sr(sHKV)))
        e("s_lshl_b32 %s, %s, 2" % (sr(sT0), sr(sT0)))
        e("s_add_u32 %s, %s, %s" % (sr(sT0), sr(sT0), sr(sW)))
        e("s_mul_i32 s%d, %s, 6144" % (95+k, sr(sT0)))
        e("s_add_u32 s%d, s%d, 4096" % (98+k, 95+k))
def e1t_tail(e, cfg):
    G = [224+4*g for g in range(6)]
    D = lambda i: G[i//3] + i % 3
    e("v_lshlrev_b32 v26, 4, v0")
    e("s_lshl_b32 %s, s2, 2" % sr(sT0))
    e("s_add_u32 %s, %s, %s" % (sr(sT0), sr(sT0), sr(sW)))
    e("s_mul_i32 s92, %s, 6144" % sr(sT0))
    e("s_add_u32 s93, s92, 4096")
    e1t_base(e)
    for g in range(6): e("v_mov_b32 %s, %s" % (vr(G[g]+3), sr(sTA)))
    e("v_mov_b32 %s, v31" % vr(D(16)))
    e("v_mov_b32 %s, v30" % vr(D(17)))
    e.nop(4)
    for k in range(16):
        e("v_cvt_pk_bf16_f32 %s, %s, %s" % (vr(D(k)), vr(OACC+2*k), vr(OACC+2*k+1)))
    for g in range(6):
        e.vmi(("e1s", g), "buffer_store_dwordx4 %s, v26, %s, %s offen offset:%d%s" % (vr(G[g], 4), sr(rWS, 4), "s92" if g < 4 else "s93", (g & 3)*1024, SC))
    tsn(e, cfg, 'e1s')
    e("s_mov_b32 s101, 7")
    e("s_mov_b32 %s, 0" % sr(sT3))
    e("s_mov_b32 %s, 7" % sr(sT2))
    e("v_mov_b32 v22, %d" % (1024 + 63*16 + 12))
    if cfg.get('e1first'): e("s_branch L_e1_full")
    e.label("L_e1_retry")
    e("s_add_u32 s94, s94, 1")
    e("s_cmp_ge_u32 s94, 0x40000")
    e("s_cbranch_scc1 L_exitA")
    PV = (23, 29, 30 + 256)
    PV = (23, 27, 28)
    for k in range(3):
        e("s_bitcmp1_b32 s101, %d" % k)
        e("s_cbranch_scc0 L_e1_ps%d" % k)
        e("buffer_load_dword %s, v22, %s, s%d offen%s" % (vr(PV[k]), sr(rWS, 4), 98+k, SC))
        e.label("L_e1_ps%d" % k)
    e.vm0()
    e("s_mov_b32 %s, 0" % sr(sT2))
    for k in range(3):
        e("v_readfirstlane_b32 %s, %s" % (sr(sT1), vr(PV[k])))
        e("s_cmp_eq_u32 %s, %s" % (sr(sT1), sr(sTA)))
        e("s_cselect_b32 %s, %d, 0" % (sr(sT1), 1 << k))
        e("s_or_b32 %s, %s, %s" % (sr(sT2), sr(sT2), sr(sT1)))
    e("s_and_b32 %s, %s, s101" % (sr(sT2), sr(sT2)))
    e("s_cbranch_scc0 L_e1_retry")
    e.label("L_e1_full")
    def full(sc, u):
        for k in range(3):
            e("s_bitcmp1_b32 %s, %d" % (sr(sT2), k))
            e("s_cbranch_scc0 L_e1_sk%d%s" % (k, u))
            for g in range(6):
                e("buffer_load_dwordx4 %s, v26, %s, s%d offen offset:%d%s" % (vr(E1G[k][g], 4), sr(rWS, 4), (95 if g < 4 else 98)+k, (g & 3)*1024, sc))
            e.label("L_e1_sk%d%s" % (k, u))
    if cfg.get('e1plain'):
        e("s_cmp_lg_u32 %s, 0" % sr(sT3))
        e("s_cbranch_scc1 L_e1_f2")
        full("", "a")
        e("s_branch L_e1_f3")
        e.label("L_e1_f2")
        full(SC, "b")
        e.label("L_e1_f3")
    else:
        full(SC, "b")
    e.vm0()
    for k in range(3):
        e("s_bitcmp1_b32 %s, %d" % (sr(sT2), k))
        e("s_cbranch_scc0 L_e1_ok%d" % k)
        t = [E1G[k][g]+3 for g in range(6)]
        for g in range(6): e("v_xor_b32 %s, %s, %s" % (vr(t[g]), sr(sTA), vr(t[g])))
        e("v_or3_b32 v27, %s, %s, %s" % (vr(t[0]), vr(t[1]), vr(t[2])))
        e("v_or3_b32 v28, %s, %s, %s" % (vr(t[3]), vr(t[4]), vr(t[5])))
        e("v_or_b32 v27, v27, v28")
        e("v_cmp_ne_u32 vcc, 0, v27")
        e.nop(4)
        e("s_cbranch_vccz L_e1_g%d" % k)
        e("s_mov_b32 %s, 1" % sr(sT3))
        e("s_branch L_e1_ok%d" % k)
        e.label("L_e1_g%d" % k)
        e("s_bitset0_b32 s101, %d" % k)
        e.label("L_e1_ok%d" % k)
    e("s_cmp_lg_u32 s101, 0")
    e("s_cbranch_scc1 L_e1_retry")
    tsn(e, cfg, 'e1')

def tail(e, cfg):
    if cfg.get('e1tag'):
        e1t_tail(e, cfg)
        return tail2(e, cfg, [31] + [e1d(k, 16) for k in range(3)], [30] + [e1d(k, 17) for k in range(3)], e1d)
    tail1(e, cfg)
    tail2(e, cfg, [31] + [b for b in E1S], [30] + [b+1 for b in E1S], lambda j, k: E1R[j]+k)

def tail1(e, cfg):
    PK = 80
    PK = 224; ST = 240
    if cfg.get('trtail'): PK = 64; ST = 80
    e("v_lshlrev_b32 v26, 4, v0")
    e("s_mov_b32 %s, 0xfffffffe" % sr(sM2))
    e.nop(10)
    for k in range(16):
        e("v_cvt_pk_bf16_f32 %s, %s, %s" % (vr(PK+k), vr(OACC+2*k), vr(OACC+2*k+1)))
    for k in range(16):
        e("v_min_u32 %s, %s, %s" % (vr(PK+k), sr(sM2), vr(PK+k)))
    e("v_min_u32 %s, %s, v31" % (vr(ST), sr(sM2)))
    e("v_min_u32 %s, %s, v30" % (vr(ST+1), sr(sM2)))
    e("v_mov_b32 %s, %s" % (vr(ST+2), vr(ST)))
    e("v_mov_b32 %s, %s" % (vr(ST+3), vr(ST+1)))
    for r4 in range(4):
        e.vmi(("e1s", r4), "buffer_store_dwordx4 %s, v26, %s, s92 offen offset:%d%s" % (vr(PK+4*r4, 4), sr(rWS, 4), r4*1024, SC))
    e("s_add_u32 %s, s92, 4096" % sr(sT0))
    e.vmi(("e1s", 4), "buffer_store_dwordx4 %s, v26, %s, %s offen%s" % (vr(ST, 4), sr(rWS, 4), sr(sT0), SC))
    tsn(e, cfg, 'e1s')
    if cfg.get('trtail'):
        for ks in range(4):
            e.vmw(("wo", ks, 7))
            transpose8(e, RAWO+32*ks, WOF[ks])
    e("s_nop 1")
    e.label("L_e1_retry")
    e("s_add_u32 s94, s94, 1")
    e("s_cmp_ge_u32 s94, 0x40000")
    e("s_cbranch_scc1 L_exitA")
    e1_loads(e)
    e.vm0()
    e1_check(e)
    e.nop(4)
    e("s_cbranch_vccnz L_e1_retry")
    tsn(e, cfg, 'e1')

def tail2(e, cfg, m, l, srcf):
    e("v_max3_f32 v28, %s, %s, %s" % (vr(m[0]), vr(m[1]), vr(m[2])))
    e("v_max_f32 v28, v28, %s" % vr(m[3]))
    W = [18, 19, 20, 21]
    for j in range(4): e("v_sub_f32 %s, %s, v28" % (vr(W[j]), vr(m[j])))
    for j in range(4): e("v_exp_f32 %s, %s" % (vr(W[j]), vr(W[j])))
    e.nop(1)
    e("v_mul_f32 v28, %s, %s" % (vr(W[0]), vr(l[0])))
    for j in range(1, 4): e("v_fmac_f32 v28, %s, %s" % (vr(W[j]), vr(l[j])))
    e("v_rcp_f32 v28, v28")
    e.nop(1)
    for j in range(4): e("v_mul_f32 %s, %s, v28" % (vr(W[j]), vr(W[j])))
    e("s_mov_b32 %s, 0xffff0000" % sr(sT2))
    for k in range(32): e("v_mul_f32 %s, %s, %s" % (vr(OACC+k), vr(OACC+k), vr(W[0])))
    for j in range(1, 4):
        for k in range(16):
            src = vr(srcf(j-1, k))
            d = 28 + 2*(k & 0)
            e("v_lshlrev_b32 v28, 16, %s" % src)
            e("v_and_b32 v29, %s, %s" % (sr(sT2), src))
            e("v_fmac_f32 %s, v28, %s" % (vr(OACC+2*k), vr(W[j])))
            e("v_fmac_f32 %s, v29, %s" % (vr(OACC+2*k+1), vr(W[j])))
    OF = 64
    for k in range(16):
        e("v_cvt_pk_bf16_f32 %s, %s, %s" % (vr(OF+k), vr(OACC+2*k), vr(OACC+2*k+1)))
    e.nop(2)
    ACC = 32
    for ks in range(4):
        for j in range(8):
            c = "0" if ks == 0 else vr(ACC+4*j, 4)
            e("v_mfma_f32_16x16x32_bf16 %s, %s, %s, %s" % (vr(ACC+4*j, 4), vr(WOF[ks]+4*j, 4), vr(OF+4*ks, 4), c))
    e("v_add_u32 v27, %s, v26" % sr(sRING))
    e("v_bfe_u32 v28, v0, 1, 3")
    e("v_lshlrev_b32 v28, 14, v28")
    e("v_lshrrev_b32 v29, 4, v0")
    e("v_lshl_add_u32 v28, v29, 5, v28")
    e("v_and_b32 v29, 1, v0")
    e("v_lshl_add_u32 v25, v29, 4, v28")
    e.nop(2)
    for j in range(8):
        e.lgi(("opw", j), "ds_write_b128 v27, %s offset:%d" % (vr(ACC+4*j, 4), j*1024))
    e.lg0()
    e("s_barrier")
    e("s_lshl_b32 %s, %s, 11" % (sr(sT0), sr(sW)))
    e("v_add_u32 v27, %s, v26" % sr(sT0))
    T = ACC
    for jj in range(2):
        for w in range(3):
            e.lgi(("opr", jj, w), "ds_read_b128 %s, v27 offset:%d" % (vr(T+16*jj+4*w, 4), jj*1024 + w*RING))
    e("v_add_u32 v28, %d, v27" % (3*RING))
    for jj in range(2):
        e.lgi(("opr3", jj), "ds_read_b128 %s, v28 offset:%d" % (vr(T+16*jj+12, 4), jj*1024))
    e("s_lshl_b32 %s, %s, 2" % (sr(sT0), sr(sB)))
    e("s_add_u32 %s, %s, %s" % (sr(sT0), sr(sT0), sr(sSP)))
    e("s_lshl_b32 %s, %s, 17" % (sr(sT0), sr(sT0)))
    e("s_add_u32 %s, %s, 0x%x" % (sr(sT0), sr(sT0), WS_E2))
    e("s_lshl_b32 %s, %s, 12" % (sr(sT1), sr(sW)))
    e("s_add_u32 %s, %s, %s" % (sr(sT0), sr(sT0), sr(sT1)))
    e("s_lshl_b32 %s, %s, 7" % (sr(sT1), sr(sHKV)))
    e("s_add_u32 %s, %s, %s" % (sr(sT1), sr(sT1), sr(sT0)))
    e("s_lshl_b32 %s, %s, 14" % (sr(sT2), sr(sHKV)))
    e("s_add_u32 s93, %s, %s" % (sr(sT2), sr(sT0)))
    e.lg0()
    G = 64
    for jj in range(2):
        b0 = T+16*jj
        for k in range(4):
            e("v_add_f32 %s, %s, %s" % (vr(b0+k), vr(b0+k), vr(b0+4+k)))
            e("v_add_f32 %s, %s, %s" % (vr(b0+8+k), vr(b0+8+k), vr(b0+12+k)))
        for r in range(4):
            g = G + 4*(2*jj+(r >> 1)) + 2*(r & 1)
            e("v_add_f32 %s, %s, %s" % (vr(g), vr(b0+r), vr(b0+8+r)))
    for t in range(4):
        e("v_mov_b32 %s, %s" % (vr(G+4*t+1), sr(sTA)))
        e("v_mov_b32 %s, %s" % (vr(G+4*t+3), sr(sTB)))
    for t in range(4):
        e.vmi(("e2s", t), "buffer_store_dwordx4 %s, v25, %s, %s offen offset:%d%s" % (vr(G+4*t, 4), sr(rWS, 4), sr(sT1), t*1024, SC))
    tsn(e, cfg, 'e2s')
    e("v_and_b32 v28, 1, v0")
    e("s_lshl_b32 %s, %s, 1" % (sr(sT2), sr(sHKV)))
    e("v_add_u32 v28, %s, v28" % sr(sT2))
    e("v_mul_u32_u24 v28, 896, v28")
    e("v_bfe_u32 v29, v0, 1, 2")
    e("v_lshl_add_u32 v28, v29, 6, v28")
    e("v_bfe_u32 v30, v0, 5, 1")
    e("v_bfe_u32 v31, v0, 4, 1")
    e("v_lshl_add_u32 v30, v30, 1, v31")
    e("v_lshl_add_u32 v28, v30, 4, v28")
    e("s_mul_i32 %s, %s, 14336" % (sr(sT2), sr(sB)))
    e("s_lshl_b32 %s, %s, 8" % (sr(sT3), sr(sSP)))
    e("s_add_u32 %s, %s, %s" % (sr(sT2), sr(sT2), sr(sT3)))
    e("s_lshl_b32 %s, %s, 2" % (sr(sT3), sr(sW)))
    e("s_add_u32 %s, %s, %s" % (sr(sT2), sr(sT2), sr(sT3)))
    e("v_add_u32 v24, %s, v28" % sr(sT2))
    e("v_lshl_add_u32 v29, v29, 2, v30")
    e("v_bfe_u32 v31, v0, 3, 1")
    e("v_lshl_add_u32 v29, v31, 4, v29")
    e("v_mov_b32 v31, 0x40000000")
    e("s_cmp_eq_u32 %s, 3" % sr(sSP))
    e("s_cselect_b32 %s, 8, 16" % sr(sT3))
    e("v_cmp_le_u32 vcc, %s, v29" % sr(sT3))
    e.nop(2)
    e("v_cndmask_b32 v24, v24, v31, vcc")
    F = 80
    e.label("L_e2_retry")
    e("s_add_u32 s94, s94, 1")
    e("s_cmp_ge_u32 s94, 0x40000")
    e("s_cbranch_scc1 L_exitA")
    for t in range(4):
        e.vmi(("e2l", t), "buffer_load_dwordx4 %s, v26, %s, s93 offen offset:%d%s" % (vr(F+4*t, 4), sr(rWS, 4), t*1024, SC))
    if cfg.get('e2mask', 1): e("s_mov_b64 exec, -1")
    e.vm0()
    tagcheck(e, [F+4*t for t in range(4)])
    e.nop(4)
    if cfg.get('e2mask', 1):
        e("s_and_b64 exec, vcc, vcc")
        e("s_cbranch_scc1 L_e2_retry")
        e("s_mov_b64 exec, -1")
    else:
        e("s_cbranch_vccnz L_e2_retry")
    tsn(e, cfg, 'e2')
    V = lambda jj, r: F + 4*(2*jj+(r >> 1)) + 2*(r & 1)
    for jj in range(2):
        for r in range(2):
            e("v_permlane32_swap_b32 %s, %s" % (vr(V(jj, r)), vr(V(jj, r+2))))
    e.nop(2)
    for jj in range(2):
        for r in range(2):
            e("v_add_f32 %s, %s, %s" % (vr(V(jj, r)), vr(V(jj, r)), vr(V(jj, r+2))))
    e.nop(2)
    for jj in range(2):
        e("v_permlane16_swap_b32 %s, %s" % (vr(V(jj, 0)), vr(V(jj, 1))))
    e.nop(2)
    for jj in range(2):
        e("v_add_f32 %s, %s, %s" % (vr(V(jj, 0)), vr(V(jj, 0)), vr(V(jj, 1))))
    e.nop(2)
    for jj in range(2):
        e("v_add_f32_dpp %s, %s, %s row_ror:8 row_mask:0xf bank_mask:0xf" % (vr(V(jj, 1)), vr(V(jj, 0)), vr(V(jj, 0))))
    e.nop(2)
    e("v_cvt_pk_bf16_f32 v30, %s, %s" % (vr(V(0, 1)), vr(V(1, 1))))
    e("buffer_store_dword v30, v24, %s, 0 offen" % sr(rOUT, 4))
    e("s_and_b32 %s, s2, 31" % sr(sT0))
    e("s_or_b32 %s, %s, %s" % (sr(sT0), sr(sT0), sr(sW)))
    e("s_cmp_lg_u32 %s, 0" % sr(sT0))
    e("s_cbranch_scc1 L_nobump")
    e("v_mov_b32 v30, %s" % sr(sTA))
    e("v_mov_b32 v31, 0")
    e("s_lshl_b32 %s, %s, 8" % (sr(sT0), sr(sB)))
    e("s_add_u32 %s, %s, 0x%x" % (sr(sT0), sr(sT0), WS_EP))
    e("s_mov_b64 exec, 1")
    e("buffer_store_dword v30, v31, %s, %s offen%s" % (sr(rWS, 4), sr(sT0), SC))
    e.label("L_nobump")

def build_v2(cfg):
    name = "standalone__gqa_block_cached__sampling_kernel"
    e = Em(); c = dict(cfg); c['exit'] = "L_exitA"; c['uid'] = 0
    tsn(e, c, 'start')
    common_prologue(e, 256, c)
    e("s_mov_b32 s94, 0")
    attn_setup(e, c)
    e("v_lshrrev_b32 v28, 4, v0")
    e("v_and_b32 v29, 15, v0")
    e("v_lshlrev_b32 v30, 16, v28")
    e("v_lshl_add_u32 v30, v29, 4, v30")
    e("s_lshl_b32 %s, %s, 18" % (sr(sT0), sr(sW)))
    e("v_add_u32 v14, %s, v30" % sr(sT0))
    e("s_lshl_b32 %s, %s, 8" % (sr(sT3), sr(sB)))
    e("s_add_u32 %s, %s, 0x%x" % (sr(sT3), sr(sT3), WS_EP))
    e("s_waitcnt lgkmcnt(0)")
    e("s_load_dword %s, %s, %s" % (sr(sM2), sr(sWS, 2), sr(sT3)))
    attn_srds(e)
    e("s_lshl_b32 %s, %s, 10" % (sr(sT0), sr(sHKV)))
    e("s_lshl_b32 %s, %s, 8" % (sr(sT1), sr(sSP)))
    e("s_add_u32 %s, %s, %s" % (sr(sT0), sr(sT0), sr(sT1)))
    e("s_add_u32 %s, %s, %s" % (sr(rWQ), sr(sWQ), sr(sT0)))
    e("s_addc_u32 %s, %s, 0" % (sr(rWQ+1), sr(sWQ+1)))
    e("s_sub_u32 %s, %d, %s" % (sr(rWQ+2), 448*8192, sr(sT0)))
    wo_srd(e)
    tsn(e, c, 'srd')
    c['wo_sched'] = mk_wo_sched(c)
    nt = c.get('nt', " nt")
    c['nt'] = nt
    nu = [0]
    def kd(n):
        for _ in range(n):
            if nu[0] < R:
                k_dma(e, nu[0], nt); nu[0] += 1
                if nu[0] % 4 == 0: tsn(e, c, 'ik%d' % nu[0])
    q_issue(e, c, kd)
    tsn(e, c, 'qiss')
    e("s_waitcnt lgkmcnt(0)")
    e("s_add_u32 %s, %s, 0x%x" % (sr(sTA), sr(sM2), C1))
    e("s_add_u32 %s, %s, 0x%x" % (sr(sTB), sr(sTA), C2))
    q_compute(e, c, kd)
    if c.get('wopf', 0) == 1: e.vmi(("pf", 1), "global_load_dword v31, v22, %s" % sr(sWO, 2))
    kd(R)
    tsn(e, c, 'qdone')
    kphase2(e, c)
    tsn(e, c, 'kend')
    softmax(e, c)
    c['pump'](16)
    tsn(e, c, 'smend')
    c['vhook'] = mk_vhook(c)
    vphase(e, c)
    tsn(e, c, 'vend')
    tail(e, c)
    tsn(e, c, 'end')
    e.vm0()
    if c.get('tsn') and c.get('dbg'):
        n = len(c['tsn'])
        e("s_waitcnt lgkmcnt(0)")
        e("s_mov_b64 exec, 1")
        e("v_mov_b32 v1, 0")
        for i in range(n):
            e("v_mov_b32 v2, %s" % sr(sTS+2*i))
            e("global_atomic_add v1, v2, s[16:17] offset:%d" % (4*i))
        e("s_not_b32 s20, %s" % sr(sTS))
        e("v_mov_b32 v2, s20")
        e("global_atomic_umax v1, v2, s[16:17] offset:56")
        e("v_mov_b32 v2, %s" % sr(sTS+2*(n-1)))
        e("global_atomic_umax v1, v2, s[16:17] offset:60")
        e.vm0()
    elif c.get('tsn'):
        c['ts'] = 1
        ts_store(e, c, len(c['tsn']))
    e.label("L_exitA")
    e("s_endpgm")
    txt = HDR + "; @launch grid=(256,1,1) block=(256,1,1) lds=%d\n" % LDS_A
    txt += HEAD + kernel_text(name, e.text())
    txt += '.section .rodata,"a"\n.p2align 6\n' + kd_text(name, 512, 256)
    return txt

if __name__ == "__main__":
    import json
    cfg = json.loads(sys.argv[2]) if len(sys.argv) > 2 else {}
    open(sys.argv[1], "w").write(build_v2(cfg))
```

```python
import sys, math

class Em:
    def __init__(self):
        self.L = []
        self.vm = []
        self.lg = []
    def __call__(self, s):
        self.L.append("    " + s)
    def label(self, s):
        self.L.append(s + ":")
    def c(self, s):
        self.L.append("    ; " + s)
    def vmi(self, tag, s):
        self(s); self.vm.append(tag)
    def lgi(self, tag, s):
        self(s); self.lg.append(tag)
    def _wait(self, lst, tag, name, mx):
        idx = None
        for i, t in enumerate(lst):
            if t == tag: idx = i
        if idx is None:
            return lst
        n = len(lst) - 1 - idx
        if n <= mx:
            self("s_waitcnt %s(%d)" % (name, n))
        else:
            raise Exception("too many outstanding for %s: %d" % (name, n))
        return lst[idx+1:]
    def vmw(self, tag):
        self.vm = self._wait(self.vm, tag, "vmcnt", 63)
    def lgw(self, tag):
        self.lg = self._wait(self.lg, tag, "lgkmcnt", 15)
    def vm0(self):
        self("s_waitcnt vmcnt(0)"); self.vm = []
    def lg0(self):
        self("s_waitcnt lgkmcnt(0)"); self.lg = []
    def nop(self, n):
        while n > 0:
            k = min(n, 16); self("s_nop %d" % (k-1)); n -= k
    def text(self):
        return "\n".join(self.L)

def vr(a, n=1): return "v%d" % a if n == 1 else "v[%d:%d]" % (a, a+n-1)
def ar(a, n=1): return "a%d" % a if n == 1 else "a[%d:%d]" % (a, a+n-1)
def sr(a, n=1): return "s%d" % a if n == 1 else "s[%d:%d]" % (a, a+n-1)

R = 30
RING = R*1024
PBASE = 4*RING
MAXB = PBASE + 32768
SUMB = MAXB + 1024
LDS_A = SUMB + 1024
WS_PART = 0
WS_STATS = 4 << 20
WS_OP2 = 5 << 20
WS_FLAG = 8 << 20
WS_TS = 9 << 20
SCALE = math.log2(math.e)/16.0

def f2u(x):
    import struct
    return struct.unpack("<I", struct.pack("<f", x))[0]

sX, sK, sV, sWQ, sWO, sOUT, sDBG, sWS = 4, 6, 8, 10, 12, 14, 16, 18
rK, rV, rWQ, rX, rWS, rWO, rOUT = 20, 24, 28, 32, 36, 40, 44
sW, sHKV, sSP, sB, sRING, sOFF, sT0, sT1, sT2, sT3 = 48, 49, 50, 51, 52, 53, 54, 55, 56, 57
sPLO, sPHI, sSC = 60, 61, 62
sTS = 64

def srd(e, r, ptr, off_s, size):
    if off_s is None:
        e("s_mov_b32 %s, %s" % (sr(r), sr(ptr)))
        e("s_mov_b32 %s, %s" % (sr(r+1), sr(ptr+1)))
    else:
        e("s_add_u32 %s, %s, %s" % (sr(r), sr(ptr), sr(off_s)))
        e("s_addc_u32 %s, %s, 0" % (sr(r+1), sr(ptr+1)))
    e("s_mov_b32 %s, 0x%x" % (sr(r+2), size))
    e("s_mov_b32 %s, 0x00020000" % sr(r+3))

def common_prologue(e, nwg, cfg):
    e("s_cmp_ge_u32 s2, %d" % nwg)
    e("s_cbranch_scc1 %s" % cfg['exit'])
    e("s_load_dwordx16 s[4:19], s[0:1], 0")
    e("v_lshrrev_b32 v1, 6, v0")
    e("v_and_b32 v0, 63, v0")
    e("s_and_b32 %s, s2, 7" % sr(sHKV))
    e("v_readfirstlane_b32 %s, v1" % sr(sW))
    e("s_lshr_b32 %s, s2, 3" % sr(sSP))
    e("s_and_b32 %s, %s, 3" % (sr(sSP), sr(sSP)))
    e("s_lshr_b32 %s, s2, 5" % sr(sB))
    e("s_mov_b32 %s, 0x05040100" % sr(sPLO))
    e("s_mov_b32 %s, 0x07060302" % sr(sPHI))

def ts(e, cfg, idx):
    if cfg.get('ts'):
        e("s_memrealtime %s" % sr(sTS + 2*idx, 2))

def ts_store(e, cfg, n):
    if not cfg.get('ts'): return
    e("s_waitcnt lgkmcnt(0)")
    e("s_lshl_b32 %s, s2, 2" % sr(sT0))
    e("s_add_u32 %s, %s, %s" % (sr(sT0), sr(sT0), sr(sW)))
    e("s_lshl_b32 %s, %s, 7" % (sr(sT0), sr(sT0)))
    e("s_add_u32 %s, %s, 0x%x" % (sr(sT0), sr(sT0), WS_TS))
    e("v_mov_b32 v1, %s" % sr(sT0))
    for i in range(n):
        e("v_mov_b32 v2, %s" % sr(sTS+2*i))
        e("v_mov_b32 v3, %s" % sr(sTS+2*i+1))
        e("global_store_dwordx2 v1, v[2:3], %s offset:%d" % (sr(sWS, 2), 8*i))

CROT = 2
def col_block(e, d):
    e("s_add_u32 %s, %s, %d" % (sr(d), sr(sSP), CROT))
    e("s_and_b32 %s, %s, 3" % (sr(d), sr(d)))
    e("s_lshl_b32 %s, %s, 8" % (sr(d), sr(d)))
def wo_srd(e):
    e("s_lshl_b32 %s, %s, 3" % (sr(sT0), sr(sHKV)))
    e("s_add_u32 %s, %s, %s" % (sr(sT0), sr(sT0), sr(sW)))
    e("s_mul_i32 %s, %s, %d" % (sr(sT0), sr(sT0), 64*896))
    col_block(e, sT1)
    e("s_add_u32 %s, %s, %s" % (sr(sT0), sr(sT0), sr(sT1)))
    e("s_add_u32 %s, %s, %s" % (sr(rWO), sr(sWO), sr(sT0)))
    e("s_addc_u32 %s, %s, 0" % (sr(rWO+1), sr(sWO+1)))
    e("s_sub_u32 %s, %d, %s" % (sr(rWO+2), 4096*896, sr(sT0)))
    e("s_mov_b32 %s, 0x00020000" % sr(rWO+3))

def wo_vaddr(e, v, t0, t1):
    e("v_lshrrev_b32 %s, 4, v0" % vr(t0))
    e("v_and_b32 %s, 1, %s" % (vr(t1), vr(t0)))
    e("v_lshlrev_b32 %s, 8, %s" % (vr(t1), vr(t1)))
    e("v_lshrrev_b32 %s, 1, %s" % (vr(t0), vr(t0)))
    e("v_lshl_add_u32 %s, %s, 2, %s" % (vr(t1), vr(t0), vr(t1)))
    e("v_mul_u32_u24 %s, 896, %s" % (vr(t1), vr(t1)))
    e("v_and_b32 %s, 15, v0" % vr(t0))
    e("v_lshl_add_u32 %s, %s, 4, %s" % (vr(v), vr(t0), vr(t1)))
    e("s_cmp_eq_u32 %s, %d" % (sr(sSP), (3-CROT) & 3))
    e("s_cselect_b32 %s, 8, 16" % sr(sT0))
    e("v_cmp_le_u32 vcc, %s, %s" % (sr(sT0), vr(t0)))
    e("v_mov_b32 %s, 0x40000000" % vr(t1))
    e("s_nop 1")
    e("v_cndmask_b32 %s, %s, %s, vcc" % (vr(v), vr(v), vr(t1)))

def wo_load(e, kstep, s, dst, vaddr):
    d, ee = kstep >> 1, kstep & 1
    off = (32*d + 16*ee + 8*(s >> 2) + (s & 3))*896
    e("s_mov_b32 %s, %d" % (sr(sOFF), off))
    e.vmi(("wo", kstep, s), "buffer_load_dwordx4 %s, %s, %s, %s offen" % (vr(dst, 4), vr(vaddr), sr(rWO, 4), sr(sOFF)))

def transpose8(e, raw, dst, cols=range(8)):
    for j in cols:
        for p in range(4):
            sel = sPHI if (j & 1) else sPLO
            e("v_perm_b32 %s, %s, %s, %s" % (vr(dst+4*j+p), vr(raw+4*(2*p+1)+(j >> 1)), vr(raw+4*(2*p)+(j >> 1)), sr(sel)))

def outproj_tail(e, cfg, OF, WOF, ACC, ldsbase, sc):
    for ks in range(4):
        for j in range(8):
            c = "0" if ks == 0 else vr(ACC+4*j, 4)
            e("v_mfma_f32_16x16x32_bf16 %s, %s, %s, %s" % (vr(ACC+4*j, 4), vr(WOF[ks]+4*j, 4), vr(OF+4*ks, 4), c))
    e("s_lshl_b32 %s, %s, 13" % (sr(sT0), sr(sW)))
    e("s_add_u32 %s, %s, %d" % (sr(sT0), sr(sT0), ldsbase))
    e("v_lshlrev_b32 v26, 4, v0")
    e("v_add_u32 v27, %s, v26" % sr(sT0))
    e.nop(6)
    for j in range(8):
        e.lgi(("opw", j), "ds_write_b128 v27, %s offset:%d" % (vr(ACC+4*j, 4), j*1024))
    e.lg0()
    e("s_barrier")
    e("s_lshl_b32 %s, %s, 11" % (sr(sT0), sr(sW)))
    e("s_add_u32 %s, %s, %d" % (sr(sT0), sr(sT0), ldsbase))
    e("v_add_u32 v27, %s, v26" % sr(sT0))
    T = ACC
    for jj in range(2):
        for w in range(4):
            e.lgi(("opr", jj, w), "ds_read_b128 %s, v27 offset:%d" % (vr(T+16*jj+4*w, 4), w*8192+jj*1024))
    e("s_lshl_b32 %s, %s, 2" % (sr(sT0), sr(sB)))
    e("s_add_u32 %s, %s, %s" % (sr(sT0), sr(sT0), sr(sSP)))
    e("s_lshl_b32 %s, %s, 3" % (sr(sT0), sr(sT0)))
    e("s_add_u32 %s, %s, %s" % (sr(sT0), sr(sT0), sr(sHKV)))
    e("s_lshl_b32 %s, %s, 13" % (sr(sT0), sr(sT0)))
    e("s_lshl_b32 %s, %s, 11" % (sr(sT1), sr(sW)))
    e("s_add_u32 %s, %s, %s" % (sr(sT0), sr(sT0), sr(sT1)))
    e("s_add_u32 %s, %s, 0x%x" % (sr(sT0), sr(sT0), WS_OP2))
    for jj in range(2):
        e.lgw(("opr", jj, 3))
        b0 = T+16*jj
        for k in range(4):
            e("v_add_f32 %s, %s, %s" % (vr(b0+k), vr(b0+k), vr(b0+4+k)))
            e("v_add_f32 %s, %s, %s" % (vr(b0+8+k), vr(b0+8+k), vr(b0+12+k)))
        for k in range(4):
            e("v_add_f32 %s, %s, %s" % (vr(b0+k), vr(b0+k), vr(b0+8+k)))
        e.vmi(("op2", jj), "buffer_store_dwordx4 %s, v26, %s, %s offen offset:%d%s" % (vr(b0, 4), sr(rWS, 4), sr(sT0), jj*1024, sc))

def final_reduce(e, cfg, sc, T=32):
    e("v_and_b32 v26, 7, v0")
    e("v_bfe_u32 v27, v0, 3, 2")
    e("v_lshrrev_b32 v28, 5, v0")
    e("s_lshl_b32 %s, %s, 1" % (sr(sT0), sr(sHKV)))
    e("v_add_u32 v28, %s, v28" % sr(sT0))
    e("v_lshlrev_b32 v29, 10, v26")
    e("v_lshl_add_u32 v30, v27, 4, v28")
    e("v_lshl_add_u32 v29, v30, 4, v29")
    e("s_lshl_b32 %s, %s, 2" % (sr(sT0), sr(sB)))
    e("s_add_u32 %s, %s, %s" % (sr(sT0), sr(sT0), sr(sSP)))
    e("s_lshl_b32 %s, %s, 16" % (sr(sT0), sr(sT0)))
    e("s_add_u32 %s, %s, 0x%x" % (sr(sT0), sr(sT0), WS_OP2))
    for p in range(8):
        e.vmi(("fr", p), "buffer_load_dwordx4 %s, v29, %s, %s offen%s" % (vr(T+4*p, 4), sr(rWS, 4), sr(sT0), sc))
        if p < 7: e("s_add_u32 %s, %s, 8192" % (sr(sT0), sr(sT0)))
    e("v_mul_u32_u24 v30, 896, v28")
    e("v_lshl_add_u32 v30, v27, 6, v30")
    e("v_lshl_add_u32 v30, v26, 1, v30")
    e("s_mul_i32 %s, %s, 14336" % (sr(sT1), sr(sB)))
    e("s_mul_i32 %s, %s, 224" % (sr(sT2), sr(sSP)))
    e("s_add_u32 %s, %s, %s" % (sr(sT1), sr(sT1), sr(sT2)))
    e("v_add_u32 v30, %s, v30" % sr(sT1))
    e("v_mov_b32 v31, 0x40000000")
    e("v_cmp_eq_u32 vcc, 3, v27")
    e.nop(2)
    e("v_cndmask_b32 v31, v30, v31, vcc")
    e.vmw(("fr", 3))
    for k in range(4):
        e("v_add_f32 %s, %s, %s" % (vr(T+k), vr(T+k), vr(T+4+k)))
        e("v_add_f32 %s, %s, %s" % (vr(T+8+k), vr(T+8+k), vr(T+12+k)))
    e.vmw(("fr", 7))
    for k in range(4):
        e("v_add_f32 %s, %s, %s" % (vr(T+16+k), vr(T+16+k), vr(T+20+k)))
        e("v_add_f32 %s, %s, %s" % (vr(T+24+k), vr(T+24+k), vr(T+28+k)))
    for k in range(4):
        e("v_add_f32 %s, %s, %s" % (vr(T+k), vr(T+k), vr(T+8+k)))
        e("v_add_f32 %s, %s, %s" % (vr(T+16+k), vr(T+16+k), vr(T+24+k)))
    for k in range(4):
        e("v_add_f32 %s, %s, %s" % (vr(T+k), vr(T+k), vr(T+16+k)))
    e("v_cvt_pk_bf16_f32 %s, %s, %s" % (vr(T+4), vr(T), vr(T+1)))
    e("v_cvt_pk_bf16_f32 %s, %s, %s" % (vr(T+5), vr(T+2), vr(T+3)))
    e("v_lshrrev_b32 %s, 16, %s" % (vr(T+6), vr(T+4)))
    e("v_lshrrev_b32 %s, 16, %s" % (vr(T+7), vr(T+5)))
    e("buffer_store_short %s, v30, %s, 0 offen" % (vr(T+4), sr(rOUT, 4)))
    e("buffer_store_short %s, v30, %s, 0 offen offset:16" % (vr(T+6), sr(rOUT, 4)))
    e("buffer_store_short %s, v31, %s, 0 offen offset:32" % (vr(T+5), sr(rOUT, 4)))
    e("buffer_store_short %s, v31, %s, 0 offen offset:48" % (vr(T+7), sr(rOUT, 4)))
```

```python
from gen2 import *

WS_E1 = 0
WS_E0 = 6 << 20
WS_E2 = 10 << 20
WS_EP = 16 << 20
C1, C2 = 0x9E3779B9, 0x7F4A7C15
sTA, sTB, sM2 = 58, 59, 63
SC = " sc1"
def tsn(e, cfg, name):
    L = cfg.get('tsn')
    if L and name in L:
        e("s_memrealtime %s" % sr(sTS + 2*L.index(name), 2))

def q_issue(e, cfg, kd):
    RAW = 128
    e("s_lshl_b32 %s, s2, 2" % sr(sT0))
    e("s_add_u32 %s, %s, %s" % (sr(sT0), sr(sT0), sr(sW)))
    e("s_mul_i32 %s, %s, 5120" % (sr(sT0), sr(sT0)))
    if WS_E1: e("s_add_u32 %s, %s, 0x%x" % (sr(sT0), sr(sT0), WS_E1))
    e("s_mov_b32 s92, %s" % sr(sT0))
    for k in range(4): e("v_mov_b32 %s, -1" % vr(96+k))
    e("v_lshlrev_b32 v26, 4, v0")
    def clears():
        for k in range(5):
            e("s_add_u32 %s, s92, %d" % (sr(sT0), k*1024))
            e.vmi(("clr", k), "buffer_store_dwordx4 v[96:99], v26, %s, %s offen%s" % (sr(rWS, 4), sr(sT0), SC))
    cp = cfg.get('clrpos', 9)
    if cfg.get('e1tag'): cp = -1
    if cp == 0: clears()
    if cfg.get('pref', 1):
        e("s_lshl_b32 %s, %s, 2" % (sr(sT0), sr(sB)))
        e("s_add_u32 %s, %s, %s" % (sr(sT0), sr(sT0), sr(sSP)))
        e("s_lshl_b32 %s, %s, 2" % (sr(sT0), sr(sT0)))
        e("s_add_u32 %s, %s, %s" % (sr(sT0), sr(sT0), sr(sW)))
        e("s_mul_i32 %s, %s, 28" % (sr(sT0), sr(sT0)))
        e("v_min_u32 v28, 27, v0")
        e("v_add_u32 v28, %s, v28" % sr(sT0))
        e("v_lshrrev_b32 v29, 3, v28")
        e("v_lshlrev_b32 v29, 13, v29")
        e("v_and_b32 v30, 7, v28")
        e("v_lshl_add_u32 v29, v30, 7, v29")
        e("s_lshl_b32 %s, %s, 10" % (sr(sT1), sr(sHKV)))
        e("v_add_u32 v29, %s, v29" % sr(sT1))
        e("v_lshlrev_b32 v28, 7, v28")
        e("s_mul_i32 %s, %s, %d" % (sr(sT1), sr(sHKV), 512*896))
        e("v_add_u32 v28, %s, v28" % sr(sT1))
        e.vmi(("pf", 0), "global_load_dword v30, v29, %s" % sr(sWQ, 2))
        if cfg.get('wopf', 0) == 0: e.vmi(("pf", 1), "global_load_dword v31, v28, %s" % sr(sWO, 2))
        else: e("v_mov_b32 v22, v28")
    if cp == 1: clears()
    if cfg.get('pf2'):
        e("v_mov_b32 v27, 0")
        e("s_lshl_b32 %s, %s, 16" % (sr(sT0), sr(sW)))
        e.vmi(("pf", 2), "buffer_load_dword v24, v27, %s, %s offen" % (sr(rV, 4), sr(sT0)))
        if cfg['pf2'] > 1:
            e("s_lshl_b32 %s, s2, 13" % sr(sT0))
            e("s_add_u32 %s, %s, 0x%x" % (sr(sT0), sr(sT0), WS_E0))
            e.vmi(("pf", 3), "buffer_load_dword v25, v27, %s, %s offen" % (sr(rWS, 4), sr(sT0)))
            e("s_lshl_b32 %s, s2, 14" % sr(sT0))
            e("s_add_u32 %s, %s, 0x%x" % (sr(sT0), sr(sT0), WS_E2))
            e.vmi(("pf", 4), "buffer_load_dword v23, v27, %s, %s offen" % (sr(rWS, 4), sr(sT0)))
            e.vmi(("pf", 5), "buffer_load_dword v22, v27, %s, 0 offen" % (sr(rOUT, 4)))
    kd(cfg.get('k0', 8))
    for t in range(4):
        e("s_lshl_b32 %s, %s, 6" % (sr(sT0), sr(sW)))
        if t: e("s_add_u32 %s, %s, %d" % (sr(sT0), sr(sT0), t*256))
        if t == 3:
            e("s_cmp_ge_u32 %s, 2" % sr(sW))
            e("s_cselect_b32 %s, 0x40000000, %s" % (sr(sT0), sr(sT0)))
        e.vmi(("x", t), "buffer_load_dwordx4 %s, v15, %s, %s offen" % (ar(4*t, 4), sr(rX, 4), sr(sT0)))
    tsn(e, cfg, 'ix')
    for t in range(4):
        for r in range(8):
            e("s_mov_b32 %s, %d" % (sr(sOFF), (128*t+r)*8192))
            e.vmi(("wq", t, r), "buffer_load_dwordx4 %s, v14, %s, %s offen" % (vr(RAW+32*t+4*r, 4), sr(rWQ, 4), sr(sOFF)))
            m = cfg.get('kmix', 0)
            if m and (8*t+r) % m == m-1: kd(1)
        tsn(e, cfg, 'iq%d' % t)
    if cp == 9: clears()

def q_compute(e, cfg, kd):
    RAW, ACC, TB = 128, 32, 64
    def perms(raw, c):
        buf = TB + 8*(c & 1)
        for jj in range(2):
            j = 2*c+jj
            for p in range(4):
                sel = sPHI if (j & 1) else sPLO
                e("v_perm_b32 %s, %s, %s, %s" % (vr(buf+4*jj+p), vr(raw+4*(2*p+1)+c), vr(raw+4*(2*p)+c), sr(sel)))
    def mf(t, c):
        buf = TB + 8*(c & 1)
        for jj in range(2):
            j = 2*c+jj
            cc = "0" if t == 0 else vr(ACC+4*j, 4)
            e("v_mfma_f32_16x16x32_bf16 %s, %s, %s, %s" % (vr(ACC+4*j, 4), vr(buf+4*jj, 4), ar(4*t, 4), cc))
    left = cfg.get('kmid', 0)
    for t in range(4):
        raw = RAW+32*t
        e.vmw(("wq", t, 7))
        tsn(e, cfg, 'wq%d' % t)
        perms(raw, 0); kd(1); perms(raw, 1); mf(t, 0); kd(1); perms(raw, 2); mf(t, 1); kd(1); perms(raw, 3); mf(t, 2)
        kd(1)
        mf(t, 3)
    e("s_lshl_b32 %s, %s, 13" % (sr(sT0), sr(sW)))
    e("s_add_u32 %s, %s, %d" % (sr(sT0), sr(sT0), PBASE))
    e("v_add_u32 v27, %s, v26" % sr(sT0))
    e.nop(6)
    for j in range(8):
        e.lgi(("qw", j), "ds_write_b128 v27, %s offset:%d" % (vr(ACC+4*j, 4), j*1024))
    kd(2)
    tsn(e, cfg, 'qmf')
    if not cfg.get('e1tag'): e.vmw(("clr", 4))
    tsn(e, cfg, 'clr')
    e.lg0()
    e("s_barrier")
    tsn(e, cfg, 'qbar')
    e("s_lshl_b32 %s, %s, 11" % (sr(sT0), sr(sW)))
    e("s_add_u32 %s, %s, %d" % (sr(sT0), sr(sT0), PBASE))
    e("v_add_u32 v27, %s, v26" % sr(sT0))
    for jj in range(2):
        for w in range(4):
            e.lgi(("qr", jj, w), "ds_read_b128 %s, v27 offset:%d" % (vr(ACC+16*jj+4*w, 4), w*8192+jj*1024))
    kd(2)
    for jj in range(2):
        e.lgw(("qr", jj, 3))
        b0 = ACC+16*jj
        for k in range(4):
            e("v_add_f32 %s, %s, %s" % (vr(b0+k), vr(b0+k), vr(b0+4+k)))
            e("v_add_f32 %s, %s, %s" % (vr(b0+8+k), vr(b0+8+k), vr(b0+12+k)))
        for k in range(4):
            e("v_add_f32 %s, %s, %s" % (vr(b0+k), vr(b0+k), vr(b0+8+k)))
    e("s_barrier")
    for r in range(4):
        e("v_cvt_pk_bf16_f32 %s, %s, %s" % (vr(64+2*r), vr(ACC+r), vr(ACC+16+r)))
    for g in range(2):
        e("v_mov_b32 %s, %s" % (vr(64+4*g+1), sr(sTA)))
        e("v_mov_b32 %s, %s" % (vr(64+4*g+3), sr(sTB)))
    e("s_lshl_b32 %s, s2, 2" % sr(sT0))
    e("s_add_u32 %s, %s, %s" % (sr(sT0), sr(sT0), sr(sW)))
    e("s_lshl_b32 %s, %s, 11" % (sr(sT0), sr(sT0)))
    e("s_add_u32 %s, %s, 0x%x" % (sr(sT0), sr(sT0), WS_E0))
    for g in range(2):
        e.vmi(("e0s", g), "buffer_store_dwordx4 %s, v26, %s, %s offen offset:%d%s" % (vr(64+4*g, 4), sr(rWS, 4), sr(sT0), g*1024, SC))

def e0_loads(e, SC=SC):
    e("s_lshl_b32 %s, %s, 5" % (sr(sT0), sr(sB)))
    e("s_add_u32 %s, %s, %s" % (sr(sT0), sr(sT0), sr(sHKV)))
    e("s_lshl_b32 %s, %s, 2" % (sr(sT0), sr(sT0)))
    e("s_add_u32 %s, %s, %s" % (sr(sT0), sr(sT0), sr(sW)))
    e("s_lshl_b32 %s, %s, 11" % (sr(sT0), sr(sT0)))
    e("s_add_u32 %s, %s, 0x%x" % (sr(sT0), sr(sT0), WS_E0))
    e("v_lshlrev_b32 v26, 4, v0")
    for p in range(4):
        for g in range(2):
            e.vmi(("e0l", p, g), "buffer_load_dwordx4 %s, v26, %s, %s offen offset:%d%s" % (vr(96+8*p+4*g, 4), sr(rWS, 4), sr(sT0), g*1024, SC))
        if p < 3: e("s_add_u32 %s, %s, %d" % (sr(sT0), sr(sT0), 8*4*2048))

def tagcheck(e, regs):
    first = True
    for r in regs:
        e("v_xor_b32 v28, %s, %s" % (sr(sTA), vr(r+1)))
        e("v_xor_b32 v29, %s, %s" % (sr(sTB), vr(r+3)))
        if first: e("v_or_b32 v27, v28, v29"); first = False
        else: e("v_or3_b32 v27, v27, v28, v29")
    e("v_cmp_ne_u32 vcc, 0, v27")

def e0_finish(e, cfg):
    e.vmw(("e0l", 3, 1))
    keep = list(e.vm)
    regs = [96+8*p+4*g for p in range(4) for g in range(2)]
    tagcheck(e, regs)
    e.nop(4)
    e("s_cbranch_vccz L_e0_ok")
    e.label("L_e0_retry")
    e("s_add_u32 s94, s94, 1")
    e("s_cmp_ge_u32 s94, 0x40000")
    e("s_cbranch_scc1 L_exitA")
    sv = e.vm; e.vm = []
    e0_loads(e)
    e.vm0()
    tagcheck(e, regs)
    e.nop(4)
    e("s_cbranch_vccnz L_e0_retry")
    e.label("L_e0_ok")
    e.vm = keep
    e("v_lshrrev_b32 v28, 4, v0")
    e("v_and_b32 v29, 15, v0")
    e("v_lshlrev_b32 v28, 11, v28")
    e("v_lshl_add_u32 v28, v29, 4, v28")
    e("s_lshl_b32 %s, %s, 2" % (sr(sT0), sr(sW)))
    e("s_add_u32 %s, %s, %d" % (sr(sT0), sr(sT0), PBASE))
    e("v_add_u32 v28, %s, v28" % sr(sT0))
    for p in range(4):
        for r in range(4):
            off = (p & 1)*8192 + (r >> 1)*1024 + (r & 1)*512 + (p >> 1)*256
            e.lgi(("qs", p, r), "ds_write_b32 v28, %s offset:%d" % (vr(96+8*p+2*r), off))
            if len(e.lg) >= 12: e.lgw(e.lg[3])
    e.lg0()
    e("s_barrier")
    for s in range(16):
        if s == 12: e.lgw(("qf", 3))
        e.lgi(("qf", s), "ds_read_b128 %s, v12 offset:%d" % (ar(64+4*s, 4), s*1024))

def k_addr(e, T):
    e("v_add_u32 v26, %d, v17" % ((16*T) % R))
    e("v_cmp_le_u32 vcc, %d, v26" % R)
    e("v_subrev_u32 v27, %d, v26" % R)
    e.nop(1)
    e("v_cndmask_b32 v26, v26, v27, vcc")
    e("v_lshl_add_u32 v18, v26, 10, v16")
    for j in range(1, 8):
        e("v_xor_b32 %s, %d, v18" % (vr(18+j), j << 5))

def kphase2(e, cfg):
    S0, KF = 32, 96
    nt = cfg.get('nt', "")
    wo_sched = cfg['wo_sched']
    def refill(T, shadow=None):
        wl = wo_sched.get(('K', T), [])
        n = len(wl); done = 0
        for i, u in enumerate(range(16*T+R, 16*T+R+16)):
            k_dma(e, u, nt)
            tsn(e, cfg, 'rf%d_%d' % (T, i))
            if shadow: shadow(i)
            tgt = ((i+1)*n)//16
            while done < tgt:
                ks, s = wl[done]; wo_load(e, ks, s, RAWO+32*ks+4*s, 14); done += 1
            if T == cfg.get('e0T', 0) and i == cfg.get('e0i', 15): e0_loads(e, "" if cfg.get('e0plain') else SC)
    for T in range(2):
        k_addr(e, T)
        e.vmw(("u", 16*T+15))
        tsn(e, cfg, 'u%d' % T)
        for s in range(16):
            if s == 12: e.lgw(("ka", T, 3))
            e.lgi(("ka", T, s), "ds_read_b128 %s, %s offset:%d" % (ar(128+64*T+4*s, 4), vr(18+(s & 7)), (s >> 3)*256))
        e.lg0()
        tsn(e, cfg, 'cp%d' % T)
        if T == 0: wo_vaddr(e, 14, 28, 29)
        refill(T)
        tsn(e, cfg, 't%d' % T)
    e0_finish(e, cfg)
    tsn(e, cfg, 'e0')
    k_addr(e, 2)
    e.lg0()
    def tile_lds(T):
        e.vmw(("u", 16*T+15))
        def rd(s):
            e.lgi(("kr", T, s), "ds_read_b128 %s, %s offset:%d" % (vr(KF+4*(s & 7), 4), vr(18+(s & 7)), (s >> 3)*256))
        for s in range(8): rd(s)
        for s in range(16):
            e.lgw(("kr", T, s))
            cc = "0" if s == 0 else vr(S0+16*T, 16)
            e("v_mfma_f32_32x32x16_bf16 %s, %s, %s, %s" % (vr(S0+16*T, 16), vr(KF+4*(s & 7), 4), ar(64+4*s, 4), cc))
            if s+8 < 16: rd(s+8)
    tile_lds(2)
    deferred = [(T, s) for T in range(2) for s in range(16)]
    def shadow(i):
        for T, s in deferred[2*i:2*i+2]:
            cc = "0" if s == 0 else vr(S0+16*T, 16)
            e("v_mfma_f32_32x32x16_bf16 %s, %s, %s, %s" % (vr(S0+16*T, 16), ar(128+64*T+4*s, 4), ar(64+4*s, 4), cc))
    refill(2, shadow)
    k_addr(e, 3)
    tile_lds(3)
    tsn(e, cfg, 'k3')
    pend = list(range(48+R, 48+R+16))
    wl = list(wo_sched.get(('K', 3), []))
    cnt = [0]
    def pump(n):
        for _ in range(n):
            if pend:
                k_dma(e, pend.pop(0), nt); cnt[0] += 1
                if wl and cnt[0] % 2 == 0:
                    ks, s_ = wl.pop(0); wo_load(e, ks, s_, RAWO+32*ks+4*s_, 14)
        if not pend:
            while wl:
                ks, s_ = wl.pop(0); wo_load(e, ks, s_, RAWO+32*ks+4*s_, 14)
    cfg['pump'] = pump

def mk_vhook(cfg):
    sched = cfg['wo_sched']; t0 = cfg.get('tr0', 0); per = cfg.get('trper', 1)
    def vhook(e, t):
        for ks, s_ in sched.get(('V', t), []):
            wo_load(e, ks, s_, RAWO+32*ks+4*s_, 14)
        for c in range(per):
            idx = (t-t0)*per + c
            if t >= t0 and idx < 32 and not cfg.get('trtail'):
                ks, j = idx >> 3, idx & 7
                if j == 0: e.vmw(("wo", ks, 7))
                transpose8(e, RAWO+32*ks, WOF[ks], cols=[j])
        if cfg.get('e1tag'): e1_vhook(e, cfg, t)
    return vhook
def mk_wo_sched(cfg):
    allw = [(ks, s_) for ks in range(4) for s_ in range(8)]
    plan = cfg.get('woplan', [["K",0,8],["K",1,8],["K",2,8],["K",3,8]])
    sched = {}; i = 0
    for kind, idx, n in plan:
        sched[(kind, idx)] = allw[i:i+n]; i += n
    assert i == 32
    return sched

E1R = (64, 80, 224)
E1S = (240, 244, 248)
def e1_loads(e):
    for k in range(1, 4):
        e("s_add_u32 %s, %s, %d" % (sr(sT0), sr(sSP), k))
        e("s_and_b32 %s, %s, 3" % (sr(sT0), sr(sT0)))
        e("s_lshl_b32 %s, %s, 2" % (sr(sT1), sr(sB)))
        e("s_add_u32 %s, %s, %s" % (sr(sT0), sr(sT0), sr(sT1)))
        e("s_lshl_b32 %s, %s, 3" % (sr(sT0), sr(sT0)))
        e("s_add_u32 %s, %s, %s" % (sr(sT0), sr(sT0), sr(sHKV)))
        e("s_lshl_b32 %s, %s, 2" % (sr(sT0), sr(sT0)))
        e("s_add_u32 %s, %s, %s" % (sr(sT0), sr(sT0), sr(sW)))
        e("s_mul_i32 %s, %s, 5120" % (sr(sT0), sr(sT0)))
        if WS_E1: e("s_add_u32 %s, %s, 0x%x" % (sr(sT0), sr(sT0), WS_E1))
        for r4 in range(4):
            e.vmi(("e1l", k, r4), "buffer_load_dwordx4 %s, v26, %s, %s offen offset:%d%s" % (vr(E1R[k-1]+4*r4, 4), sr(rWS, 4), sr(sT0), r4*1024, SC))
        e("s_add_u32 %s, %s, 4096" % (sr(sT0), sr(sT0)))
        e.vmi(("e1l", k, 4), "buffer_load_dwordx4 %s, v26, %s, %s offen%s" % (vr(E1S[k-1], 4), sr(rWS, 4), sr(sT0), SC))

def e1_check(e):
    regs = [b+i for b in E1R for i in range(16)] + [b+i for b in E1S for i in range(4)]
    e("v_max3_u32 v27, %s, %s, %s" % (vr(regs[0]), vr(regs[1]), vr(regs[2])))
    e("v_max3_u32 v28, %s, %s, %s" % (vr(regs[3]), vr(regs[4]), vr(regs[5])))
    i = 6; tog = 0
    while i < len(regs):
        d = 27+tog
        e("v_max3_u32 %s, %s, %s, %s" % (vr(d), vr(d), vr(regs[i]), vr(regs[i+1]))); i += 2; tog ^= 1
    e("v_max_u32 v27, v27, v28")
    e("v_cmp_eq_u32 vcc, -1, v27")

def e1t_base(e):
    for k in range(3):
        e("s_add_u32 %s, %s, %d" % (sr(sT0), sr(sSP), k+1))
        e("s_and_b32 %s, %s, 3" % (sr(sT0), sr(sT0)))
        e("s_lshl_b32 %s, %s, 2" % (sr(sT1), sr(sB)))
        e("s_add_u32 %s, %s, %s" % (sr(sT0), sr(sT0), sr(sT1)))
        e("s_lshl_b32 %s, %s, 3" % (sr(sT0), sr(sT0)))
        e("s_add_u32 %s, %s, %s" % (sr(sT0), sr(sT0), sr(sHKV)))
        e("s_lshl_b32 %s, %s, 2" % (sr(sT0), sr(sT0)))
        e("s_add_u32 %s, %s, %s" % (sr(sT0), sr(sT0), sr(sW)))
        e("s_mul_i32 s%d, %s, 6144" % (95+k, sr(sT0)))
        e("s_add_u32 s%d, s%d, 4096" % (98+k, 95+k))
PV = (23, 27, 28)
E1E = ([224+4*g for g in range(6)], [248, 252, 88, 92, 2, 6], [64+4*g for g in range(6)])
def e1_light(e, u, cond=True):
    for k in range(3):
        if cond:
            e("s_bitcmp1_b32 s101, %d" % k)
            e("s_cbranch_scc0 L_e1_ps%d%s" % (k, u))
        ins = "buffer_load_dword %s, v22, %s, s%d offen%s" % (vr(PV[k]), sr(rWS, 4), 98+k, SC)
        if cond: e(ins); e.label("L_e1_ps%d%s" % (k, u))
        else: e.vmi(("e1p", k), ins)
def e1_ready(e):
    e("s_mov_b32 %s, 0" % sr(sT2))
    for k in range(3):
        e("v_readfirstlane_b32 %s, %s" % (sr(sT1), vr(PV[k])))
        e("s_cmp_eq_u32 %s, %s" % (sr(sT1), sr(sTA)))
        e("s_cselect_b32 %s, %d, 0" % (sr(sT1), 1 << k))
        e("s_or_b32 %s, %s, %s" % (sr(sT2), sr(sT2), sr(sT1)))
    e("s_and_b32 %s, %s, s101" % (sr(sT2), sr(sT2)))
def e1_full(e, u):
    for k in range(3):
        e("s_bitcmp1_b32 %s, %d" % (sr(sT2), k))
        e("s_cbranch_scc0 L_e1_sk%d%s" % (k, u))
        for g in range(6):
            dst = ar(4*g, 4) if k == 2 else vr(E1E[k][g], 4)
            e("buffer_load_dwordx4 %s, v26, %s, s%d offen offset:%d%s" % (dst, sr(rWS, 4), (95 if g < 4 else 98)+k, (g & 3)*1024, SC))
        e.label("L_e1_sk%d%s" % (k, u))
def e1_vhook(e, cfg, t):
    if t == cfg.get('e1poll', 16):
        e("v_lshlrev_b32 v26, 4, v0")
        e1t_base(e)
        e("s_mov_b32 s101, 7")
        e("v_mov_b32 v22, %d" % (1024 + 63*16 + 12))
        e1_light(e, "e", cond=False)
    if t == cfg['e1early']:
        e.vm0()
        e1_ready(e)
        e1_full(e, "e")
def e1t_tail(e, cfg):
    G = [64+4*g for g in range(6)]
    D = lambda i: G[i//3] + i % 3
    e("s_lshl_b32 %s, s2, 2" % sr(sT0))
    e("s_add_u32 %s, %s, %s" % (sr(sT0), sr(sT0), sr(sW)))
    e("s_mul_i32 s92, %s, 6144" % sr(sT0))
    e("s_add_u32 s93, s92, 4096")
    e.nop(8)
    for g in range(6): e("v_mov_b32 %s, %s" % (vr(G[g]+3), sr(sTA)))
    e("v_mov_b32 %s, v31" % vr(D(16)))
    e("v_mov_b32 %s, v30" % vr(D(17)))
    e.nop(4)
    for k in range(16):
        e("v_cvt_pk_bf16_f32 %s, %s, %s" % (vr(D(k)), vr(OACC+2*k), vr(OACC+2*k+1)))
    for g in range(6):
        e("buffer_store_dwordx4 %s, v26, %s, %s offen offset:%d%s" % (vr(G[g], 4), sr(rWS, 4), "s92" if g < 4 else "s93", (g & 3)*1024, SC))
    tsn(e, cfg, 'e1s')
    e("s_branch L_e1_chk")
    e.label("L_e1_retry")
    e("s_add_u32 s94, s94, 1")
    e("s_cmp_ge_u32 s94, 0x40000")
    e("s_cbranch_scc1 L_exitA")
    e1_light(e, "r")
    e.vm0()
    e1_ready(e)
    e("s_cbranch_scc0 L_e1_retry")
    e1_full(e, "r")
    e.label("L_e1_chk")
    e.vm0()
    for k in range(3):
        e("s_bitcmp1_b32 %s, %d" % (sr(sT2), k))
        e("s_cbranch_scc0 L_e1_ok%d" % k)
        if k == 2:
            for i in range(24): e("v_accvgpr_read_b32 %s, %s" % (vr(64+i), ar(i)))
        t = [E1E[k][g]+3 for g in range(6)]
        for g in range(6): e("v_xor_b32 %s, %s, %s" % (vr(t[g]), sr(sTA), vr(t[g])))
        e("v_or3_b32 v27, %s, %s, %s" % (vr(t[0]), vr(t[1]), vr(t[2])))
        e("v_or3_b32 v28, %s, %s, %s" % (vr(t[3]), vr(t[4]), vr(t[5])))
        e("v_or_b32 v27, v27, v28")
        e("v_cmp_ne_u32 vcc, 0, v27")
        e.nop(4)
        e("s_cbranch_vccnz L_e1_ok%d" % k)
        e("s_bitset0_b32 s101, %d" % k)
        e.label("L_e1_ok%d" % k)
    e("s_cmp_lg_u32 s101, 0")
    e("s_cbranch_scc1 L_e1_retry")
    tsn(e, cfg, 'e1')

def e1d(k, i):
    return E1E[k][i//3] + i % 3
def tail(e, cfg):
    if cfg.get('e1tag'):
        e1t_tail(e, cfg)
        return tail2(e, cfg, [31] + [e1d(k, 16) for k in range(3)], [30] + [e1d(k, 17) for k in range(3)], e1d)
    tail1(e, cfg)
    tail2(e, cfg, [31] + [b for b in E1S], [30] + [b+1 for b in E1S], lambda j, k: E1R[j]+k)

def tail1(e, cfg):
    PK = 80
    PK = 224; ST = 240
    if cfg.get('trtail'): PK = 64; ST = 80
    e("v_lshlrev_b32 v26, 4, v0")
    e("s_mov_b32 %s, 0xfffffffe" % sr(sM2))
    e.nop(10)
    for k in range(16):
        e("v_cvt_pk_bf16_f32 %s, %s, %s" % (vr(PK+k), vr(OACC+2*k), vr(OACC+2*k+1)))
    for k in range(16):
        e("v_min_u32 %s, %s, %s" % (vr(PK+k), sr(sM2), vr(PK+k)))
    e("v_min_u32 %s, %s, v31" % (vr(ST), sr(sM2)))
    e("v_min_u32 %s, %s, v30" % (vr(ST+1), sr(sM2)))
    e("v_mov_b32 %s, %s" % (vr(ST+2), vr(ST)))
    e("v_mov_b32 %s, %s" % (vr(ST+3), vr(ST+1)))
    for r4 in range(4):
        e.vmi(("e1s", r4), "buffer_store_dwordx4 %s, v26, %s, s92 offen offset:%d%s" % (vr(PK+4*r4, 4), sr(rWS, 4), r4*1024, SC))
    e("s_add_u32 %s, s92, 4096" % sr(sT0))
    e.vmi(("e1s", 4), "buffer_store_dwordx4 %s, v26, %s, %s offen%s" % (vr(ST, 4), sr(rWS, 4), sr(sT0), SC))
    tsn(e, cfg, 'e1s')
    if cfg.get('trtail'):
        for ks in range(4):
            e.vmw(("wo", ks, 7))
            transpose8(e, RAWO+32*ks, WOF[ks])
    e("s_nop 1")
    e.label("L_e1_retry")
    e("s_add_u32 s94, s94, 1")
    e("s_cmp_ge_u32 s94, 0x40000")
    e("s_cbranch_scc1 L_exitA")
    e1_loads(e)
    e.vm0()
    e1_check(e)
    e.nop(4)
    e("s_cbranch_vccnz L_e1_retry")
    tsn(e, cfg, 'e1')

def tail2(e, cfg, m, l, srcf):
    e("v_max3_f32 v28, %s, %s, %s" % (vr(m[0]), vr(m[1]), vr(m[2])))
    e("v_max_f32 v28, v28, %s" % vr(m[3]))
    W = [18, 19, 20, 21]
    for j in range(4): e("v_sub_f32 %s, %s, v28" % (vr(W[j]), vr(m[j])))
    for j in range(4): e("v_exp_f32 %s, %s" % (vr(W[j]), vr(W[j])))
    e.nop(1)
    e("v_mul_f32 v28, %s, %s" % (vr(W[0]), vr(l[0])))
    for j in range(1, 4): e("v_fmac_f32 v28, %s, %s" % (vr(W[j]), vr(l[j])))
    e("v_rcp_f32 v28, v28")
    e.nop(1)
    for j in range(4): e("v_mul_f32 %s, %s, v28" % (vr(W[j]), vr(W[j])))
    e("s_mov_b32 %s, 0xffff0000" % sr(sT2))
    for k in range(32): e("v_mul_f32 %s, %s, %s" % (vr(OACC+k), vr(OACC+k), vr(W[0])))
    for j in range(1, 4):
        for k in range(16):
            src = vr(srcf(j-1, k))
            d = 28 + 2*(k & 0)
            e("v_lshlrev_b32 v28, 16, %s" % src)
            e("v_and_b32 v29, %s, %s" % (sr(sT2), src))
            e("v_fmac_f32 %s, v28, %s" % (vr(OACC+2*k), vr(W[j])))
            e("v_fmac_f32 %s, v29, %s" % (vr(OACC+2*k+1), vr(W[j])))
    OF = 64
    for k in range(16):
        e("v_cvt_pk_bf16_f32 %s, %s, %s" % (vr(OF+k), vr(OACC+2*k), vr(OACC+2*k+1)))
    e.nop(2)
    ACC = 32
    for ks in range(4):
        for j in range(8):
            c = "0" if ks == 0 else vr(ACC+4*j, 4)
            e("v_mfma_f32_16x16x32_bf16 %s, %s, %s, %s" % (vr(ACC+4*j, 4), vr(WOF[ks]+4*j, 4), vr(OF+4*ks, 4), c))
    e("v_add_u32 v27, %s, v26" % sr(sRING))
    e("v_bfe_u32 v28, v0, 1, 3")
    e("v_lshlrev_b32 v28, 14, v28")
    e("v_lshrrev_b32 v29, 4, v0")
    e("v_lshl_add_u32 v28, v29, 5, v28")
    e("v_and_b32 v29, 1, v0")
    e("v_lshl_add_u32 v25, v29, 4, v28")
    e.nop(2)
    for j in range(8):
        e.lgi(("opw", j), "ds_write_b128 v27, %s offset:%d" % (vr(ACC+4*j, 4), j*1024))
    e.lg0()
    e("s_barrier")
    e("s_lshl_b32 %s, %s, 11" % (sr(sT0), sr(sW)))
    e("v_add_u32 v27, %s, v26" % sr(sT0))
    T = ACC
    for jj in range(2):
        for w in range(3):
            e.lgi(("opr", jj, w), "ds_read_b128 %s, v27 offset:%d" % (vr(T+16*jj+4*w, 4), jj*1024 + w*RING))
    e("v_add_u32 v28, %d, v27" % (3*RING))
    for jj in range(2):
        e.lgi(("opr3", jj), "ds_read_b128 %s, v28 offset:%d" % (vr(T+16*jj+12, 4), jj*1024))
    e("s_lshl_b32 %s, %s, 2" % (sr(sT0), sr(sB)))
    e("s_add_u32 %s, %s, %s" % (sr(sT0), sr(sT0), sr(sSP)))
    e("s_lshl_b32 %s, %s, 17" % (sr(sT0), sr(sT0)))
    e("s_add_u32 %s, %s, 0x%x" % (sr(sT0), sr(sT0), WS_E2))
    e("s_lshl_b32 %s, %s, 12" % (sr(sT1), sr(sW)))
    e("s_add_u32 %s, %s, %s" % (sr(sT0), sr(sT0), sr(sT1)))
    e("s_lshl_b32 %s, %s, 7" % (sr(sT1), sr(sHKV)))
    e("s_add_u32 %s, %s, %s" % (sr(sT1), sr(sT1), sr(sT0)))
    e("s_lshl_b32 %s, %s, 14" % (sr(sT2), sr(sHKV)))
    e("s_add_u32 s93, %s, %s" % (sr(sT2), sr(sT0)))
    e.lg0()
    G = 64
    for jj in range(2):
        b0 = T+16*jj
        for k in range(4):
            e("v_add_f32 %s, %s, %s" % (vr(b0+k), vr(b0+k), vr(b0+4+k)))
            e("v_add_f32 %s, %s, %s" % (vr(b0+8+k), vr(b0+8+k), vr(b0+12+k)))
        for r in range(4):
            g = G + 4*(2*jj+(r >> 1)) + 2*(r & 1)
            e("v_add_f32 %s, %s, %s" % (vr(g), vr(b0+r), vr(b0+8+r)))
    for t in range(4):
        e("v_mov_b32 %s, %s" % (vr(G+4*t+1), sr(sTA)))
        e("v_mov_b32 %s, %s" % (vr(G+4*t+3), sr(sTB)))
    for t in range(4):
        e.vmi(("e2s", t), "buffer_store_dwordx4 %s, v25, %s, %s offen offset:%d%s" % (vr(G+4*t, 4), sr(rWS, 4), sr(sT1), t*1024, SC))
    tsn(e, cfg, 'e2s')
    e("v_and_b32 v28, 1, v0")
    e("s_lshl_b32 %s, %s, 1" % (sr(sT2), sr(sHKV)))
    e("v_add_u32 v28, %s, v28" % sr(sT2))
    e("v_mul_u32_u24 v28, 896, v28")
    e("v_bfe_u32 v29, v0, 1, 2")
    e("v_lshl_add_u32 v28, v29, 6, v28")
    e("v_bfe_u32 v30, v0, 5, 1")
    e("v_bfe_u32 v31, v0, 4, 1")
    e("v_lshl_add_u32 v30, v30, 1, v31")
    e("v_lshl_add_u32 v28, v30, 4, v28")
    e("s_mul_i32 %s, %s, 14336" % (sr(sT2), sr(sB)))
    col_block(e, sT3)
    e("s_add_u32 %s, %s, %s" % (sr(sT2), sr(sT2), sr(sT3)))
    e("s_lshl_b32 %s, %s, 2" % (sr(sT3), sr(sW)))
    e("s_add_u32 %s, %s, %s" % (sr(sT2), sr(sT2), sr(sT3)))
    e("v_add_u32 v24, %s, v28" % sr(sT2))
    e("v_lshl_add_u32 v29, v29, 2, v30")
    e("v_bfe_u32 v31, v0, 3, 1")
    e("v_lshl_add_u32 v29, v31, 4, v29")
    e("v_mov_b32 v31, 0x40000000")
    e("s_cmp_eq_u32 %s, %d" % (sr(sSP), (3-CROT) & 3))
    e("s_cselect_b32 %s, 8, 16" % sr(sT3))
    e("v_cmp_le_u32 vcc, %s, v29" % sr(sT3))
    e.nop(2)
    e("v_cndmask_b32 v24, v24, v31, vcc")
    F = 80
    e.label("L_e2_retry")
    e("s_add_u32 s94, s94, 1")
    e("s_cmp_ge_u32 s94, 0x40000")
    e("s_cbranch_scc1 L_exitA")
    for t in range(4):
        e.vmi(("e2l", t), "buffer_load_dwordx4 %s, v26, %s, s93 offen offset:%d%s" % (vr(F+4*t, 4), sr(rWS, 4), t*1024, SC))
    if cfg.get('e2mask', 1): e("s_mov_b64 exec, -1")
    e.vm0()
    tagcheck(e, [F+4*t for t in range(4)])
    e.nop(4)
    if cfg.get('e2mask', 1):
        e("s_and_b64 exec, vcc, vcc")
        e("s_cbranch_scc1 L_e2_retry")
        e("s_mov_b64 exec, -1")
    else:
        e("s_cbranch_vccnz L_e2_retry")
    tsn(e, cfg, 'e2')
    V = lambda jj, r: F + 4*(2*jj+(r >> 1)) + 2*(r & 1)
    for jj in range(2):
        for r in range(2):
            e("v_permlane32_swap_b32 %s, %s" % (vr(V(jj, r)), vr(V(jj, r+2))))
    e.nop(2)
    for jj in range(2):
        for r in range(2):
            e("v_add_f32 %s, %s, %s" % (vr(V(jj, r)), vr(V(jj, r)), vr(V(jj, r+2))))
    e.nop(2)
    for jj in range(2):
        e("v_permlane16_swap_b32 %s, %s" % (vr(V(jj, 0)), vr(V(jj, 1))))
    e.nop(2)
    for jj in range(2):
        e("v_add_f32 %s, %s, %s" % (vr(V(jj, 0)), vr(V(jj, 0)), vr(V(jj, 1))))
    e.nop(2)
    for jj in range(2):
        e("v_add_f32_dpp %s, %s, %s row_ror:8 row_mask:0xf bank_mask:0xf" % (vr(V(jj, 1)), vr(V(jj, 0)), vr(V(jj, 0))))
    e.nop(2)
    e("v_cvt_pk_bf16_f32 v30, %s, %s" % (vr(V(0, 1)), vr(V(1, 1))))
    e("buffer_store_dword v30, v24, %s, 0 offen" % sr(rOUT, 4))
    e("s_and_b32 %s, s2, 31" % sr(sT0))
    e("s_or_b32 %s, %s, %s" % (sr(sT0), sr(sT0), sr(sW)))
    e("s_cmp_lg_u32 %s, 0" % sr(sT0))
    e("s_cbranch_scc1 L_nobump")
    e("v_mov_b32 v30, %s" % sr(sTA))
    e("v_mov_b32 v31, 0")
    e("s_lshl_b32 %s, %s, 8" % (sr(sT0), sr(sB)))
    e("s_add_u32 %s, %s, 0x%x" % (sr(sT0), sr(sT0), WS_EP))
    e("s_mov_b64 exec, 1")
    e("buffer_store_dword v30, v31, %s, %s offen%s" % (sr(rWS, 4), sr(sT0), SC))
    e.label("L_nobump")

def build_v2(cfg):
    name = "standalone__gqa_block_cached__sampling_kernel"
    e = Em(); c = dict(cfg); c['exit'] = "L_exitA"; c['uid'] = 0
    tsn(e, c, 'start')
    common_prologue(e, 256, c)
    e("s_mov_b32 s94, 0")
    attn_setup(e, c)
    e("v_lshrrev_b32 v28, 4, v0")
    e("v_and_b32 v29, 15, v0")
    e("v_lshlrev_b32 v30, 16, v28")
    e("v_lshl_add_u32 v30, v29, 4, v30")
    e("s_lshl_b32 %s, %s, 18" % (sr(sT0), sr(sW)))
    e("v_add_u32 v14, %s, v30" % sr(sT0))
    e("s_lshl_b32 %s, %s, 8" % (sr(sT3), sr(sB)))
    e("s_add_u32 %s, %s, 0x%x" % (sr(sT3), sr(sT3), WS_EP))
    e("s_waitcnt lgkmcnt(0)")
    e("s_load_dword %s, %s, %s" % (sr(sM2), sr(sWS, 2), sr(sT3)))
    attn_srds(e)
    e("s_lshl_b32 %s, %s, 10" % (sr(sT0), sr(sHKV)))
    e("s_lshl_b32 %s, %s, 8" % (sr(sT1), sr(sSP)))
    e("s_add_u32 %s, %s, %s" % (sr(sT0), sr(sT0), sr(sT1)))
    e("s_add_u32 %s, %s, %s" % (sr(rWQ), sr(sWQ), sr(sT0)))
    e("s_addc_u32 %s, %s, 0" % (sr(rWQ+1), sr(sWQ+1)))
    e("s_sub_u32 %s, %d, %s" % (sr(rWQ+2), 448*8192, sr(sT0)))
    wo_srd(e)
    tsn(e, c, 'srd')
    if c.get('e1tag'):
        c.setdefault('e1early', 30); c.setdefault('trper', 2)
    c['wo_sched'] = mk_wo_sched(c)
    nt = c.get('nt', " nt")
    c['nt'] = nt
    nu = [0]
    def kd(n):
        for _ in range(n):
            if nu[0] < R:
                k_dma(e, nu[0], nt); nu[0] += 1
                if nu[0] % 4 == 0: tsn(e, c, 'ik%d' % nu[0])
    q_issue(e, c, kd)
    tsn(e, c, 'qiss')
    e("s_waitcnt lgkmcnt(0)")
    e("s_add_u32 %s, %s, 0x%x" % (sr(sTA), sr(sM2), C1))
    e("s_add_u32 %s, %s, 0x%x" % (sr(sTB), sr(sTA), C2))
    q_compute(e, c, kd)
    if c.get('wopf', 0) == 1: e.vmi(("pf", 1), "global_load_dword v31, v22, %s" % sr(sWO, 2))
    kd(R)
    tsn(e, c, 'qdone')
    kphase2(e, c)
    tsn(e, c, 'kend')
    softmax(e, c)
    c['pump'](16)
    tsn(e, c, 'smend')
    c['vhook'] = mk_vhook(c)
    vphase(e, c)
    tsn(e, c, 'vend')
    tail(e, c)
    tsn(e, c, 'end')
    e.vm0()
    if c.get('tsn') and c.get('dbg'):
        n = len(c['tsn'])
        e("s_waitcnt lgkmcnt(0)")
        e("s_mov_b64 exec, 1")
        e("v_mov_b32 v1, 0")
        for i in range(n):
            e("v_mov_b32 v2, %s" % sr(sTS+2*i))
            e("global_atomic_add v1, v2, s[16:17] offset:%d" % (4*i))
        e("s_not_b32 s20, %s" % sr(sTS))
        e("v_mov_b32 v2, s20")
        e("global_atomic_umax v1, v2, s[16:17] offset:56")
        e("v_mov_b32 v2, %s" % sr(sTS+2*(n-1)))
        e("global_atomic_umax v1, v2, s[16:17] offset:60")
        e.vm0()
    elif c.get('tsn'):
        c['ts'] = 1
        ts_store(e, c, len(c['tsn']))
    e.label("L_exitA")
    e("s_endpgm")
    txt = HDR + "; @launch grid=(256,1,1) block=(256,1,1) lds=%d\n" % LDS_A
    txt += HEAD + kernel_text(name, e.text())
    txt += '.section .rodata,"a"\n.p2align 6\n' + kd_text(name, 512, 256)
    return txt

if __name__ == "__main__":
    import json
    cfg = json.loads(sys.argv[2]) if len(sys.argv) > 2 else {}
    open(sys.argv[1], "w").write(build_v2(cfg))
```

```python
from gen2 import *

WS_E1 = 0
WS_E0 = 6 << 20
WS_E2 = 10 << 20
WS_EP = 16 << 20
C1, C2 = 0x9E3779B9, 0x7F4A7C15
sTA, sTB, sM2 = 58, 59, 63
SC = " sc1"
def tsn(e, cfg, name):
    L = cfg.get('tsn')
    if L and name in L:
        e("s_memrealtime %s" % sr(sTS + 2*L.index(name), 2))

def pf_addr(e):
    e("s_lshl_b32 %s, %s, 2" % (sr(sT0), sr(sB)))
    e("s_add_u32 %s, %s, %s" % (sr(sT0), sr(sT0), sr(sSP)))
    e("s_lshl_b32 %s, %s, 2" % (sr(sT0), sr(sT0)))
    e("s_add_u32 %s, %s, %s" % (sr(sT0), sr(sT0), sr(sW)))
    e("s_mul_i32 %s, %s, 28" % (sr(sT0), sr(sT0)))
    e("v_min_u32 v28, 27, v0")
    e("v_add_u32 v28, %s, v28" % sr(sT0))
    e("v_lshrrev_b32 v29, 3, v28")
    e("v_lshlrev_b32 v29, 13, v29")
    e("v_and_b32 v30, 7, v28")
    e("v_lshl_add_u32 v29, v30, 7, v29")
    e("s_lshl_b32 %s, %s, 10" % (sr(sT1), sr(sHKV)))
    e("v_add_u32 v29, %s, v29" % sr(sT1))
    e("v_lshlrev_b32 v28, 7, v28")
    e("s_mul_i32 %s, %s, %d" % (sr(sT1), sr(sHKV), 512*896))
    e("v_add_u32 v28, %s, v28" % sr(sT1))
def pf_loads(e):
    e.vmi(("pf", 0), "global_load_dword v30, v29, %s" % sr(sWQ, 2))
    e.vmi(("pf", 1), "global_load_dword v31, v28, %s" % sr(sWO, 2))

def q_issue(e, cfg, kd):
    RAW = 128
    e("s_lshl_b32 %s, s2, 2" % sr(sT0))
    e("s_add_u32 %s, %s, %s" % (sr(sT0), sr(sT0), sr(sW)))
    e("s_mul_i32 %s, %s, 5120" % (sr(sT0), sr(sT0)))
    if WS_E1: e("s_add_u32 %s, %s, 0x%x" % (sr(sT0), sr(sT0), WS_E1))
    e("s_mov_b32 s92, %s" % sr(sT0))
    for k in range(4): e("v_mov_b32 %s, -1" % vr(96+k))
    e("v_lshlrev_b32 v26, 4, v0")
    def clears():
        for k in range(5):
            e("s_add_u32 %s, s92, %d" % (sr(sT0), k*1024))
            e.vmi(("clr", k), "buffer_store_dwordx4 v[96:99], v26, %s, %s offen%s" % (sr(rWS, 4), sr(sT0), SC))
    cp = cfg.get('clrpos', 9)
    if cfg.get('e1tag'): cp = -1
    if cp == 0: clears()
    if cp == 1: clears()
    if cfg.get('pf2'):
        e("v_mov_b32 v27, 0")
        e("s_lshl_b32 %s, %s, 16" % (sr(sT0), sr(sW)))
        e.vmi(("pf", 2), "buffer_load_dword v24, v27, %s, %s offen" % (sr(rV, 4), sr(sT0)))
        if cfg['pf2'] > 1:
            e("s_lshl_b32 %s, s2, 13" % sr(sT0))
            e("s_add_u32 %s, %s, 0x%x" % (sr(sT0), sr(sT0), WS_E0))
            e.vmi(("pf", 3), "buffer_load_dword v25, v27, %s, %s offen" % (sr(rWS, 4), sr(sT0)))
            e("s_lshl_b32 %s, s2, 14" % sr(sT0))
            e("s_add_u32 %s, %s, 0x%x" % (sr(sT0), sr(sT0), WS_E2))
            e.vmi(("pf", 4), "buffer_load_dword v23, v27, %s, %s offen" % (sr(rWS, 4), sr(sT0)))
            e.vmi(("pf", 5), "buffer_load_dword v22, v27, %s, 0 offen" % (sr(rOUT, 4)))
    for t in range(4):
        e("s_lshl_b32 %s, %s, 6" % (sr(sT0), sr(sW)))
        if t: e("s_add_u32 %s, %s, %d" % (sr(sT0), sr(sT0), t*256))
        if t == 3:
            e("s_cmp_ge_u32 %s, 2" % sr(sW))
            e("s_cselect_b32 %s, 0x40000000, %s" % (sr(sT0), sr(sT0)))
        e.vmi(("x", t), "buffer_load_dwordx4 %s, v15, %s, %s offen" % (ar(4*t, 4), sr(rX, 4), sr(sT0)))
    tsn(e, cfg, 'ix')
    for t in range(4):
        for r in range(8):
            e("s_mov_b32 %s, %d" % (sr(sOFF), (128*t+r)*8192))
            e.vmi(("wq", t, r), "buffer_load_dwordx4 %s, v14, %s, %s offen" % (vr(RAW+32*t+4*r, 4), sr(rWQ, 4), sr(sOFF)))
            m = cfg.get('kmix', 0)
            if m and (8*t+r) % m == m-1: kd(1)
        tsn(e, cfg, 'iq%d' % t)
    if cp == 9: clears()

def q_compute(e, cfg, kd):
    RAW, ACC, TB = 128, 32, 64
    def perms(raw, c):
        buf = TB + 8*(c & 1)
        for jj in range(2):
            j = 2*c+jj
            for p in range(4):
                sel = sPHI if (j & 1) else sPLO
                e("v_perm_b32 %s, %s, %s, %s" % (vr(buf+4*jj+p), vr(raw+4*(2*p+1)+c), vr(raw+4*(2*p)+c), sr(sel)))
    def mf(t, c):
        buf = TB + 8*(c & 1)
        for jj in range(2):
            j = 2*c+jj
            cc = "0" if t == 0 else vr(ACC+4*j, 4)
            e("v_mfma_f32_16x16x32_bf16 %s, %s, %s, %s" % (vr(ACC+4*j, 4), vr(buf+4*jj, 4), ar(4*t, 4), cc))
    left = cfg.get('kmid', 0)
    for t in range(4):
        raw = RAW+32*t
        e.vmw(("wq", t, 7))
        tsn(e, cfg, 'wq%d' % t)
        perms(raw, 0); kd(1); perms(raw, 1); mf(t, 0); kd(1); perms(raw, 2); mf(t, 1); kd(1); perms(raw, 3); mf(t, 2)
        kd(1)
        mf(t, 3)
    e("s_lshl_b32 %s, %s, 13" % (sr(sT0), sr(sW)))
    e("s_add_u32 %s, %s, %d" % (sr(sT0), sr(sT0), PBASE))
    e("v_add_u32 v27, %s, v26" % sr(sT0))
    e.nop(6)
    for j in range(8):
        e.lgi(("qw", j), "ds_write_b128 v27, %s offset:%d" % (vr(ACC+4*j, 4), j*1024))
    kd(2)
    tsn(e, cfg, 'qmf')
    if not cfg.get('e1tag'): e.vmw(("clr", 4))
    tsn(e, cfg, 'clr')
    e.lg0()
    e("s_barrier")
    tsn(e, cfg, 'qbar')
    e("s_lshl_b32 %s, %s, 11" % (sr(sT0), sr(sW)))
    e("s_add_u32 %s, %s, %d" % (sr(sT0), sr(sT0), PBASE))
    e("v_add_u32 v27, %s, v26" % sr(sT0))
    for jj in range(2):
        for w in range(4):
            e.lgi(("qr", jj, w), "ds_read_b128 %s, v27 offset:%d" % (vr(ACC+16*jj+4*w, 4), w*8192+jj*1024))
    kd(2)
    for jj in range(2):
        e.lgw(("qr", jj, 3))
        b0 = ACC+16*jj
        for k in range(4):
            e("v_add_f32 %s, %s, %s" % (vr(b0+k), vr(b0+k), vr(b0+4+k)))
            e("v_add_f32 %s, %s, %s" % (vr(b0+8+k), vr(b0+8+k), vr(b0+12+k)))
        for k in range(4):
            e("v_add_f32 %s, %s, %s" % (vr(b0+k), vr(b0+k), vr(b0+8+k)))
    e("s_barrier")
    for r in range(4):
        e("v_cvt_pk_bf16_f32 %s, %s, %s" % (vr(64+2*r), vr(ACC+r), vr(ACC+16+r)))
    for g in range(2):
        e("v_mov_b32 %s, %s" % (vr(64+4*g+1), sr(sTA)))
        e("v_mov_b32 %s, %s" % (vr(64+4*g+3), sr(sTB)))
    e("s_lshl_b32 %s, s2, 2" % sr(sT0))
    e("s_add_u32 %s, %s, %s" % (sr(sT0), sr(sT0), sr(sW)))
    e("s_lshl_b32 %s, %s, 11" % (sr(sT0), sr(sT0)))
    e("s_add_u32 %s, %s, 0x%x" % (sr(sT0), sr(sT0), WS_E0))
    for g in range(2):
        e.vmi(("e0s", g), "buffer_store_dwordx4 %s, v26, %s, %s offen offset:%d%s" % (vr(64+4*g, 4), sr(rWS, 4), sr(sT0), g*1024, SC))

def e0_loads(e, SC=SC):
    e("s_lshl_b32 %s, %s, 5" % (sr(sT0), sr(sB)))
    e("s_add_u32 %s, %s, %s" % (sr(sT0), sr(sT0), sr(sHKV)))
    e("s_lshl_b32 %s, %s, 2" % (sr(sT0), sr(sT0)))
    e("s_add_u32 %s, %s, %s" % (sr(sT0), sr(sT0), sr(sW)))
    e("s_lshl_b32 %s, %s, 11" % (sr(sT0), sr(sT0)))
    e("s_add_u32 %s, %s, 0x%x" % (sr(sT0), sr(sT0), WS_E0))
    e("v_lshlrev_b32 v26, 4, v0")
    for p in range(4):
        for g in range(2):
            e.vmi(("e0l", p, g), "buffer_load_dwordx4 %s, v26, %s, %s offen offset:%d%s" % (vr(96+8*p+4*g, 4), sr(rWS, 4), sr(sT0), g*1024, SC))
        if p < 3: e("s_add_u32 %s, %s, %d" % (sr(sT0), sr(sT0), 8*4*2048))

def tagcheck(e, regs):
    first = True
    for r in regs:
        e("v_xor_b32 v28, %s, %s" % (sr(sTA), vr(r+1)))
        e("v_xor_b32 v29, %s, %s" % (sr(sTB), vr(r+3)))
        if first: e("v_or_b32 v27, v28, v29"); first = False
        else: e("v_or3_b32 v27, v27, v28, v29")
    e("v_cmp_ne_u32 vcc, 0, v27")

def e0_finish(e, cfg):
    e.vmw(("e0l", 3, 1))
    keep = list(e.vm)
    regs = [96+8*p+4*g for p in range(4) for g in range(2)]
    tagcheck(e, regs)
    e.nop(4)
    e("s_cbranch_vccz L_e0_ok")
    e.label("L_e0_retry")
    e("s_add_u32 s94, s94, 1")
    e("s_cmp_ge_u32 s94, 0x40000")
    e("s_cbranch_scc1 L_exitA")
    sv = e.vm; e.vm = []
    e0_loads(e)
    e.vm0()
    tagcheck(e, regs)
    e.nop(4)
    e("s_cbranch_vccnz L_e0_retry")
    e.label("L_e0_ok")
    e.vm = keep
    e("v_lshrrev_b32 v28, 4, v0")
    e("v_and_b32 v29, 15, v0")
    e("v_lshlrev_b32 v28, 11, v28")
    e("v_lshl_add_u32 v28, v29, 4, v28")
    e("s_lshl_b32 %s, %s, 2" % (sr(sT0), sr(sW)))
    e("s_add_u32 %s, %s, %d" % (sr(sT0), sr(sT0), PBASE))
    e("v_add_u32 v28, %s, v28" % sr(sT0))
    for p in range(4):
        for r in range(4):
            off = (p & 1)*8192 + (r >> 1)*1024 + (r & 1)*512 + (p >> 1)*256
            e.lgi(("qs", p, r), "ds_write_b32 v28, %s offset:%d" % (vr(96+8*p+2*r), off))
            if len(e.lg) >= 12: e.lgw(e.lg[3])
    e.lg0()
    e("s_barrier")
    for s in range(16):
        if s == 12: e.lgw(("qf", 3))
        e.lgi(("qf", s), "ds_read_b128 %s, v12 offset:%d" % (ar(64+4*s, 4), s*1024))

def k_addr(e, T):
    e("v_add_u32 v26, %d, v17" % ((16*T) % R))
    e("v_cmp_le_u32 vcc, %d, v26" % R)
    e("v_subrev_u32 v27, %d, v26" % R)
    e.nop(1)
    e("v_cndmask_b32 v26, v26, v27, vcc")
    e("v_lshl_add_u32 v18, v26, 10, v16")
    for j in range(1, 8):
        e("v_xor_b32 %s, %d, v18" % (vr(18+j), j << 5))

def kphase2(e, cfg):
    S0, KF = 32, 96
    nt = cfg.get('nt', "")
    wo_sched = cfg['wo_sched']
    def refill(T, shadow=None):
        wl = wo_sched.get(('K', T), [])
        n = len(wl); done = 0
        for i, u in enumerate(range(16*T+R, 16*T+R+16)):
            k_dma(e, u, nt)
            tsn(e, cfg, 'rf%d_%d' % (T, i))
            if shadow: shadow(i)
            tgt = ((i+1)*n)//16
            while done < tgt:
                ks, s = wl[done]; wo_load(e, ks, s, RAWO+32*ks+4*s, 14); done += 1
            if T == cfg.get('e0T', 0) and i == cfg.get('e0i', 15): e0_loads(e, "" if cfg.get('e0plain') else SC)
    for T in range(2):
        k_addr(e, T)
        e.vmw(("u", 16*T+15))
        tsn(e, cfg, 'u%d' % T)
        for s in range(16):
            if s == 12: e.lgw(("ka", T, 3))
            e.lgi(("ka", T, s), "ds_read_b128 %s, %s offset:%d" % (ar(128+64*T+4*s, 4), vr(18+(s & 7)), (s >> 3)*256))
        e.lg0()
        tsn(e, cfg, 'cp%d' % T)
        if T == 0: wo_vaddr(e, 14, 28, 29)
        refill(T)
        tsn(e, cfg, 't%d' % T)
    e0_finish(e, cfg)
    tsn(e, cfg, 'e0')
    k_addr(e, 2)
    e.lg0()
    def tile_lds(T):
        e.vmw(("u", 16*T+15))
        def rd(s):
            e.lgi(("kr", T, s), "ds_read_b128 %s, %s offset:%d" % (vr(KF+4*(s & 7), 4), vr(18+(s & 7)), (s >> 3)*256))
        for s in range(8): rd(s)
        for s in range(16):
            e.lgw(("kr", T, s))
            cc = "0" if s == 0 else vr(S0+16*T, 16)
            e("v_mfma_f32_32x32x16_bf16 %s, %s, %s, %s" % (vr(S0+16*T, 16), vr(KF+4*(s & 7), 4), ar(64+4*s, 4), cc))
            if s+8 < 16: rd(s+8)
    tile_lds(2)
    deferred = [(T, s) for T in range(2) for s in range(16)]
    def shadow(i):
        for T, s in deferred[2*i:2*i+2]:
            cc = "0" if s == 0 else vr(S0+16*T, 16)
            e("v_mfma_f32_32x32x16_bf16 %s, %s, %s, %s" % (vr(S0+16*T, 16), ar(128+64*T+4*s, 4), ar(64+4*s, 4), cc))
    refill(2, shadow)
    k_addr(e, 3)
    tile_lds(3)
    tsn(e, cfg, 'k3')
    pend = list(range(48+R, 48+R+16))
    wl = list(wo_sched.get(('K', 3), []))
    cnt = [0]
    def pump(n):
        for _ in range(n):
            if pend:
                k_dma(e, pend.pop(0), nt); cnt[0] += 1
                if wl and cnt[0] % 2 == 0:
                    ks, s_ = wl.pop(0); wo_load(e, ks, s_, RAWO+32*ks+4*s_, 14)
        if not pend:
            while wl:
                ks, s_ = wl.pop(0); wo_load(e, ks, s_, RAWO+32*ks+4*s_, 14)
    cfg['pump'] = pump

def mk_vhook(cfg):
    sched = cfg['wo_sched']; t0 = cfg.get('tr0', 0); per = cfg.get('trper', 1)
    def vhook(e, t):
        for ks, s_ in sched.get(('V', t), []):
            wo_load(e, ks, s_, RAWO+32*ks+4*s_, 14)
        for c in range(per):
            idx = (t-t0)*per + c
            if t >= t0 and idx < 32 and not cfg.get('trtail'):
                ks, j = idx >> 3, idx & 7
                if j == 0: e.vmw(("wo", ks, 7))
                transpose8(e, RAWO+32*ks, WOF[ks], cols=[j])
        if cfg.get('e1tag'): e1_vhook(e, cfg, t)
    return vhook
def mk_wo_sched(cfg):
    allw = [(ks, s_) for ks in range(4) for s_ in range(8)]
    plan = cfg.get('woplan', [["K",0,8],["K",1,8],["K",2,8],["K",3,8]])
    sched = {}; i = 0
    for kind, idx, n in plan:
        sched[(kind, idx)] = allw[i:i+n]; i += n
    assert i == 32
    return sched

E1R = (64, 80, 224)
E1S = (240, 244, 248)
def e1_loads(e):
    for k in range(1, 4):
        e("s_add_u32 %s, %s, %d" % (sr(sT0), sr(sSP), k))
        e("s_and_b32 %s, %s, 3" % (sr(sT0), sr(sT0)))
        e("s_lshl_b32 %s, %s, 2" % (sr(sT1), sr(sB)))
        e("s_add_u32 %s, %s, %s" % (sr(sT0), sr(sT0), sr(sT1)))
        e("s_lshl_b32 %s, %s, 3" % (sr(sT0), sr(sT0)))
        e("s_add_u32 %s, %s, %s" % (sr(sT0), sr(sT0), sr(sHKV)))
        e("s_lshl_b32 %s, %s, 2" % (sr(sT0), sr(sT0)))
        e("s_add_u32 %s, %s, %s" % (sr(sT0), sr(sT0), sr(sW)))
        e("s_mul_i32 %s, %s, 5120" % (sr(sT0), sr(sT0)))
        if WS_E1: e("s_add_u32 %s, %s, 0x%x" % (sr(sT0), sr(sT0), WS_E1))
        for r4 in range(4):
            e.vmi(("e1l", k, r4), "buffer_load_dwordx4 %s, v26, %s, %s offen offset:%d%s" % (vr(E1R[k-1]+4*r4, 4), sr(rWS, 4), sr(sT0), r4*1024, SC))
        e("s_add_u32 %s, %s, 4096" % (sr(sT0), sr(sT0)))
        e.vmi(("e1l", k, 4), "buffer_load_dwordx4 %s, v26, %s, %s offen%s" % (vr(E1S[k-1], 4), sr(rWS, 4), sr(sT0), SC))

def e1_check(e):
    regs = [b+i for b in E1R for i in range(16)] + [b+i for b in E1S for i in range(4)]
    e("v_max3_u32 v27, %s, %s, %s" % (vr(regs[0]), vr(regs[1]), vr(regs[2])))
    e("v_max3_u32 v28, %s, %s, %s" % (vr(regs[3]), vr(regs[4]), vr(regs[5])))
    i = 6; tog = 0
    while i < len(regs):
        d = 27+tog
        e("v_max3_u32 %s, %s, %s, %s" % (vr(d), vr(d), vr(regs[i]), vr(regs[i+1]))); i += 2; tog ^= 1
    e("v_max_u32 v27, v27, v28")
    e("v_cmp_eq_u32 vcc, -1, v27")

def e1t_base(e):
    for k in range(3):
        e("s_add_u32 %s, %s, %d" % (sr(sT0), sr(sSP), k+1))
        e("s_and_b32 %s, %s, 3" % (sr(sT0), sr(sT0)))
        e("s_lshl_b32 %s, %s, 2" % (sr(sT1), sr(sB)))
        e("s_add_u32 %s, %s, %s" % (sr(sT0), sr(sT0), sr(sT1)))
        e("s_lshl_b32 %s, %s, 3" % (sr(sT0), sr(sT0)))
        e("s_add_u32 %s, %s, %s" % (sr(sT0), sr(sT0), sr(sHKV)))
        e("s_lshl_b32 %s, %s, 2" % (sr(sT0), sr(sT0)))
        e("s_add_u32 %s, %s, %s" % (sr(sT0), sr(sT0), sr(sW)))
        e("s_mul_i32 s%d, %s, 6144" % (95+k, sr(sT0)))
        e("s_add_u32 s%d, s%d, 4096" % (98+k, 95+k))
PV = (23, 27, 28)
E1E = ([224+4*g for g in range(6)], [248, 252, 88, 92, 2, 6], [64+4*g for g in range(6)])
def e1_light(e, u, cond=True):
    for k in range(3):
        if cond:
            e("s_bitcmp1_b32 s101, %d" % k)
            e("s_cbranch_scc0 L_e1_ps%d%s" % (k, u))
        ins = "buffer_load_dword %s, v22, %s, s%d offen%s" % (vr(PV[k]), sr(rWS, 4), 98+k, SC)
        if cond: e(ins); e.label("L_e1_ps%d%s" % (k, u))
        else: e.vmi(("e1p", k), ins)
def e1_ready(e):
    e("s_mov_b32 %s, 0" % sr(sT2))
    for k in range(3):
        e("v_readfirstlane_b32 %s, %s" % (sr(sT1), vr(PV[k])))
        e("s_cmp_eq_u32 %s, %s" % (sr(sT1), sr(sTA)))
        e("s_cselect_b32 %s, %d, 0" % (sr(sT1), 1 << k))
        e("s_or_b32 %s, %s, %s" % (sr(sT2), sr(sT2), sr(sT1)))
    e("s_and_b32 %s, %s, s101" % (sr(sT2), sr(sT2)))
def e1_full(e, u):
    for k in range(3):
        e("s_bitcmp1_b32 %s, %d" % (sr(sT2), k))
        e("s_cbranch_scc0 L_e1_sk%d%s" % (k, u))
        for g in range(6):
            dst = ar(4*g, 4) if k == 2 else vr(E1E[k][g], 4)
            e("buffer_load_dwordx4 %s, v26, %s, s%d offen offset:%d%s" % (dst, sr(rWS, 4), (95 if g < 4 else 98)+k, (g & 3)*1024, SC))
        e.label("L_e1_sk%d%s" % (k, u))
def e1_vhook(e, cfg, t):
    if t == cfg.get('e1poll', 16):
        e("v_lshlrev_b32 v26, 4, v0")
        e1t_base(e)
        e("s_mov_b32 s101, 7")
        e("v_mov_b32 v22, %d" % (1024 + 63*16 + 12))
        e1_light(e, "e", cond=False)
    if t == cfg['e1early']:
        e.vm0()
        e1_ready(e)
        e1_full(e, "e")
def e1t_tail(e, cfg):
    G = [64+4*g for g in range(6)]
    D = lambda i: G[i//3] + i % 3
    e("s_lshl_b32 %s, s2, 2" % sr(sT0))
    e("s_add_u32 %s, %s, %s" % (sr(sT0), sr(sT0), sr(sW)))
    e("s_mul_i32 s92, %s, 6144" % sr(sT0))
    e("s_add_u32 s93, s92, 4096")
    e.nop(8)
    for g in range(6): e("v_mov_b32 %s, %s" % (vr(G[g]+3), sr(sTA)))
    e("v_mov_b32 %s, v31" % vr(D(16)))
    e("v_mov_b32 %s, v30" % vr(D(17)))
    e.nop(4)
    for k in range(16):
        e("v_cvt_pk_bf16_f32 %s, %s, %s" % (vr(D(k)), vr(OACC+2*k), vr(OACC+2*k+1)))
    for g in range(6):
        e("buffer_store_dwordx4 %s, v26, %s, %s offen offset:%d%s" % (vr(G[g], 4), sr(rWS, 4), "s92" if g < 4 else "s93", (g & 3)*1024, SC))
    tsn(e, cfg, 'e1s')
    e("s_branch L_e1_chk")
    e.label("L_e1_retry")
    e("s_add_u32 s94, s94, 1")
    e("s_cmp_ge_u32 s94, 0x40000")
    e("s_cbranch_scc1 L_exitA")
    e1_light(e, "r")
    e.vm0()
    e1_ready(e)
    e("s_cbranch_scc0 L_e1_retry")
    e1_full(e, "r")
    e.label("L_e1_chk")
    e.vm0()
    for k in range(3):
        e("s_bitcmp1_b32 %s, %d" % (sr(sT2), k))
        e("s_cbranch_scc0 L_e1_ok%d" % k)
        if k == 2:
            for i in range(24): e("v_accvgpr_read_b32 %s, %s" % (vr(64+i), ar(i)))
        t = [E1E[k][g]+3 for g in range(6)]
        for g in range(6): e("v_xor_b32 %s, %s, %s" % (vr(t[g]), sr(sTA), vr(t[g])))
        e("v_or3_b32 v27, %s, %s, %s" % (vr(t[0]), vr(t[1]), vr(t[2])))
        e("v_or3_b32 v28, %s, %s, %s" % (vr(t[3]), vr(t[4]), vr(t[5])))
        e("v_or_b32 v27, v27, v28")
        e("v_cmp_ne_u32 vcc, 0, v27")
        e.nop(4)
        e("s_cbranch_vccnz L_e1_ok%d" % k)
        e("s_bitset0_b32 s101, %d" % k)
        e.label("L_e1_ok%d" % k)
    e("s_cmp_lg_u32 s101, 0")
    e("s_cbranch_scc1 L_e1_retry")
    tsn(e, cfg, 'e1')

def e1d(k, i):
    return E1E[k][i//3] + i % 3
def tail(e, cfg):
    if cfg.get('e1tag'):
        e1t_tail(e, cfg)
        return tail2(e, cfg, [31] + [e1d(k, 16) for k in range(3)], [30] + [e1d(k, 17) for k in range(3)], e1d)
    tail1(e, cfg)
    tail2(e, cfg, [31] + [b for b in E1S], [30] + [b+1 for b in E1S], lambda j, k: E1R[j]+k)

def tail1(e, cfg):
    PK = 80
    PK = 224; ST = 240
    if cfg.get('trtail'): PK = 64; ST = 80
    e("v_lshlrev_b32 v26, 4, v0")
    e("s_mov_b32 %s, 0xfffffffe" % sr(sM2))
    e.nop(10)
    for k in range(16):
        e("v_cvt_pk_bf16_f32 %s, %s, %s" % (vr(PK+k), vr(OACC+2*k), vr(OACC+2*k+1)))
    for k in range(16):
        e("v_min_u32 %s, %s, %s" % (vr(PK+k), sr(sM2), vr(PK+k)))
    e("v_min_u32 %s, %s, v31" % (vr(ST), sr(sM2)))
    e("v_min_u32 %s, %s, v30" % (vr(ST+1), sr(sM2)))
    e("v_mov_b32 %s, %s" % (vr(ST+2), vr(ST)))
    e("v_mov_b32 %s, %s" % (vr(ST+3), vr(ST+1)))
    for r4 in range(4):
        e.vmi(("e1s", r4), "buffer_store_dwordx4 %s, v26, %s, s92 offen offset:%d%s" % (vr(PK+4*r4, 4), sr(rWS, 4), r4*1024, SC))
    e("s_add_u32 %s, s92, 4096" % sr(sT0))
    e.vmi(("e1s", 4), "buffer_store_dwordx4 %s, v26, %s, %s offen%s" % (vr(ST, 4), sr(rWS, 4), sr(sT0), SC))
    tsn(e, cfg, 'e1s')
    if cfg.get('trtail'):
        for ks in range(4):
            e.vmw(("wo", ks, 7))
            transpose8(e, RAWO+32*ks, WOF[ks])
    e("s_nop 1")
    e.label("L_e1_retry")
    e("s_add_u32 s94, s94, 1")
    e("s_cmp_ge_u32 s94, 0x40000")
    e("s_cbranch_scc1 L_exitA")
    e1_loads(e)
    e.vm0()
    e1_check(e)
    e.nop(4)
    e("s_cbranch_vccnz L_e1_retry")
    tsn(e, cfg, 'e1')

def tail2(e, cfg, m, l, srcf):
    e("v_max3_f32 v28, %s, %s, %s" % (vr(m[0]), vr(m[1]), vr(m[2])))
    e("v_max_f32 v28, v28, %s" % vr(m[3]))
    W = [18, 19, 20, 21]
    for j in range(4): e("v_sub_f32 %s, %s, v28" % (vr(W[j]), vr(m[j])))
    for j in range(4): e("v_exp_f32 %s, %s" % (vr(W[j]), vr(W[j])))
    e.nop(1)
    e("v_mul_f32 v28, %s, %s" % (vr(W[0]), vr(l[0])))
    for j in range(1, 4): e("v_fmac_f32 v28, %s, %s" % (vr(W[j]), vr(l[j])))
    e("v_rcp_f32 v28, v28")
    e.nop(1)
    for j in range(4): e("v_mul_f32 %s, %s, v28" % (vr(W[j]), vr(W[j])))
    e("s_mov_b32 %s, 0xffff0000" % sr(sT2))
    for k in range(32): e("v_mul_f32 %s, %s, %s" % (vr(OACC+k), vr(OACC+k), vr(W[0])))
    for j in range(1, 4):
        for k in range(16):
            src = vr(srcf(j-1, k))
            d = 28 + 2*(k & 0)
            e("v_lshlrev_b32 v28, 16, %s" % src)
            e("v_and_b32 v29, %s, %s" % (sr(sT2), src))
            e("v_fmac_f32 %s, v28, %s" % (vr(OACC+2*k), vr(W[j])))
            e("v_fmac_f32 %s, v29, %s" % (vr(OACC+2*k+1), vr(W[j])))
    OF = 64
    for k in range(16):
        e("v_cvt_pk_bf16_f32 %s, %s, %s" % (vr(OF+k), vr(OACC+2*k), vr(OACC+2*k+1)))
    e.nop(2)
    ACC = 32
    for ks in range(4):
        for j in range(8):
            c = "0" if ks == 0 else vr(ACC+4*j, 4)
            e("v_mfma_f32_16x16x32_bf16 %s, %s, %s, %s" % (vr(ACC+4*j, 4), vr(WOF[ks]+4*j, 4), vr(OF+4*ks, 4), c))
    e("v_add_u32 v27, %s, v26" % sr(sRING))
    e("v_bfe_u32 v28, v0, 1, 3")
    e("v_lshlrev_b32 v28, 14, v28")
    e("v_lshrrev_b32 v29, 4, v0")
    e("v_lshl_add_u32 v28, v29, 5, v28")
    e("v_and_b32 v29, 1, v0")
    e("v_lshl_add_u32 v25, v29, 4, v28")
    e.nop(2)
    for j in range(8):
        e.lgi(("opw", j), "ds_write_b128 v27, %s offset:%d" % (vr(ACC+4*j, 4), j*1024))
    e.lg0()
    e("s_barrier")
    e("s_lshl_b32 %s, %s, 11" % (sr(sT0), sr(sW)))
    e("v_add_u32 v27, %s, v26" % sr(sT0))
    T = ACC
    for jj in range(2):
        for w in range(3):
            e.lgi(("opr", jj, w), "ds_read_b128 %s, v27 offset:%d" % (vr(T+16*jj+4*w, 4), jj*1024 + w*RING))
    e("v_add_u32 v28, %d, v27" % (3*RING))
    for jj in range(2):
        e.lgi(("opr3", jj), "ds_read_b128 %s, v28 offset:%d" % (vr(T+16*jj+12, 4), jj*1024))
    e("s_lshl_b32 %s, %s, 2" % (sr(sT0), sr(sB)))
    e("s_add_u32 %s, %s, %s" % (sr(sT0), sr(sT0), sr(sSP)))
    e("s_lshl_b32 %s, %s, 17" % (sr(sT0), sr(sT0)))
    e("s_add_u32 %s, %s, 0x%x" % (sr(sT0), sr(sT0), WS_E2))
    e("s_lshl_b32 %s, %s, 12" % (sr(sT1), sr(sW)))
    e("s_add_u32 %s, %s, %s" % (sr(sT0), sr(sT0), sr(sT1)))
    e("s_lshl_b32 %s, %s, 7" % (sr(sT1), sr(sHKV)))
    e("s_add_u32 %s, %s, %s" % (sr(sT1), sr(sT1), sr(sT0)))
    e("s_lshl_b32 %s, %s, 14" % (sr(sT2), sr(sHKV)))
    e("s_add_u32 s93, %s, %s" % (sr(sT2), sr(sT0)))
    e.lg0()
    G = 64
    for jj in range(2):
        b0 = T+16*jj
        for k in range(4):
            e("v_add_f32 %s, %s, %s" % (vr(b0+k), vr(b0+k), vr(b0+4+k)))
            e("v_add_f32 %s, %s, %s" % (vr(b0+8+k), vr(b0+8+k), vr(b0+12+k)))
        for r in range(4):
            g = G + 4*(2*jj+(r >> 1)) + 2*(r & 1)
            e("v_add_f32 %s, %s, %s" % (vr(g), vr(b0+r), vr(b0+8+r)))
    for t in range(4):
        e("v_mov_b32 %s, %s" % (vr(G+4*t+1), sr(sTA)))
        e("v_mov_b32 %s, %s" % (vr(G+4*t+3), sr(sTB)))
    for t in range(4):
        e.vmi(("e2s", t), "buffer_store_dwordx4 %s, v25, %s, %s offen offset:%d%s" % (vr(G+4*t, 4), sr(rWS, 4), sr(sT1), t*1024, SC))
    tsn(e, cfg, 'e2s')
    e("v_and_b32 v28, 1, v0")
    e("s_lshl_b32 %s, %s, 1" % (sr(sT2), sr(sHKV)))
    e("v_add_u32 v28, %s, v28" % sr(sT2))
    e("v_mul_u32_u24 v28, 896, v28")
    e("v_bfe_u32 v29, v0, 1, 2")
    e("v_lshl_add_u32 v28, v29, 6, v28")
    e("v_bfe_u32 v30, v0, 5, 1")
    e("v_bfe_u32 v31, v0, 4, 1")
    e("v_lshl_add_u32 v30, v30, 1, v31")
    e("v_lshl_add_u32 v28, v30, 4, v28")
    e("s_mul_i32 %s, %s, 14336" % (sr(sT2), sr(sB)))
    col_block(e, sT3)
    e("s_add_u32 %s, %s, %s" % (sr(sT2), sr(sT2), sr(sT3)))
    e("s_lshl_b32 %s, %s, 2" % (sr(sT3), sr(sW)))
    e("s_add_u32 %s, %s, %s" % (sr(sT2), sr(sT2), sr(sT3)))
    e("v_add_u32 v24, %s, v28" % sr(sT2))
    e("v_lshl_add_u32 v29, v29, 2, v30")
    e("v_bfe_u32 v31, v0, 3, 1")
    e("v_lshl_add_u32 v29, v31, 4, v29")
    e("v_mov_b32 v31, 0x40000000")
    e("s_cmp_eq_u32 %s, %d" % (sr(sSP), (3-CROT) & 3))
    e("s_cselect_b32 %s, 8, 16" % sr(sT3))
    e("v_cmp_le_u32 vcc, %s, v29" % sr(sT3))
    e.nop(2)
    e("v_cndmask_b32 v24, v24, v31, vcc")
    F = 80
    e.label("L_e2_retry")
    e("s_add_u32 s94, s94, 1")
    e("s_cmp_ge_u32 s94, 0x40000")
    e("s_cbranch_scc1 L_exitA")
    for t in range(4):
        e.vmi(("e2l", t), "buffer_load_dwordx4 %s, v26, %s, s93 offen offset:%d%s" % (vr(F+4*t, 4), sr(rWS, 4), t*1024, SC))
    if cfg.get('e2mask', 1): e("s_mov_b64 exec, -1")
    e.vm0()
    tagcheck(e, [F+4*t for t in range(4)])
    e.nop(4)
    if cfg.get('e2mask', 1):
        e("s_and_b64 exec, vcc, vcc")
        e("s_cbranch_scc1 L_e2_retry")
        e("s_mov_b64 exec, -1")
    else:
        e("s_cbranch_vccnz L_e2_retry")
    tsn(e, cfg, 'e2')
    V = lambda jj, r: F + 4*(2*jj+(r >> 1)) + 2*(r & 1)
    for jj in range(2):
        for r in range(2):
            e("v_permlane32_swap_b32 %s, %s" % (vr(V(jj, r)), vr(V(jj, r+2))))
    e.nop(2)
    for jj in range(2):
        for r in range(2):
            e("v_add_f32 %s, %s, %s" % (vr(V(jj, r)), vr(V(jj, r)), vr(V(jj, r+2))))
    e.nop(2)
    for jj in range(2):
        e("v_permlane16_swap_b32 %s, %s" % (vr(V(jj, 0)), vr(V(jj, 1))))
    e.nop(2)
    for jj in range(2):
        e("v_add_f32 %s, %s, %s" % (vr(V(jj, 0)), vr(V(jj, 0)), vr(V(jj, 1))))
    e.nop(2)
    for jj in range(2):
        e("v_add_f32_dpp %s, %s, %s row_ror:8 row_mask:0xf bank_mask:0xf" % (vr(V(jj, 1)), vr(V(jj, 0)), vr(V(jj, 0))))
    e.nop(2)
    e("v_cvt_pk_bf16_f32 v30, %s, %s" % (vr(V(0, 1)), vr(V(1, 1))))
    e("buffer_store_dword v30, v24, %s, 0 offen" % sr(rOUT, 4))
    e("s_and_b32 %s, s2, 31" % sr(sT0))
    e("s_or_b32 %s, %s, %s" % (sr(sT0), sr(sT0), sr(sW)))
    e("s_cmp_lg_u32 %s, 0" % sr(sT0))
    e("s_cbranch_scc1 L_nobump")
    e("v_mov_b32 v30, %s" % sr(sTA))
    e("v_mov_b32 v31, 0")
    e("s_lshl_b32 %s, %s, 8" % (sr(sT0), sr(sB)))
    e("s_add_u32 %s, %s, 0x%x" % (sr(sT0), sr(sT0), WS_EP))
    e("s_mov_b64 exec, 1")
    e("buffer_store_dword v30, v31, %s, %s offen%s" % (sr(rWS, 4), sr(sT0), SC))
    e.label("L_nobump")

def build_v2(cfg):
    name = "standalone__gqa_block_cached__sampling_kernel"
    e = Em(); c = dict(cfg); c['exit'] = "L_exitA"; c['uid'] = 0
    tsn(e, c, 'start')
    common_prologue(e, 256, c)
    e("s_mov_b32 s94, 0")
    attn_setup(e, c)
    e("v_lshrrev_b32 v28, 4, v0")
    e("v_and_b32 v29, 15, v0")
    e("v_lshlrev_b32 v30, 16, v28")
    e("v_lshl_add_u32 v30, v29, 4, v30")
    e("s_lshl_b32 %s, %s, 18" % (sr(sT0), sr(sW)))
    e("v_add_u32 v14, %s, v30" % sr(sT0))
    e("s_lshl_b32 %s, %s, 8" % (sr(sT3), sr(sB)))
    e("s_add_u32 %s, %s, 0x%x" % (sr(sT3), sr(sT3), WS_EP))
    nt = c.get('nt', " nt")
    c['nt'] = nt
    nu = [0]
    def kd(n):
        for _ in range(n):
            if nu[0] < R:
                k_dma(e, nu[0], nt); nu[0] += 1
                if nu[0] % 4 == 0: tsn(e, c, 'ik%d' % nu[0])
    pf_addr(e)
    e("s_lshl_b32 %s, %s, 3" % (sr(sT2), sr(sB)))
    e("s_add_u32 %s, %s, %s" % (sr(sT2), sr(sT2), sr(sHKV)))
    e("s_lshl_b32 %s, %s, 2" % (sr(sT2), sr(sT2)))
    e("s_add_u32 %s, %s, %s" % (sr(sT2), sr(sT2), sr(sSP)))
    e("s_lshl_b32 %s, %s, 2" % (sr(sT2), sr(sT2)))
    e("s_add_u32 %s, %s, %s" % (sr(sT2), sr(sT2), sr(sW)))
    e("s_lshl_b32 %s, %s, 16" % (sr(sT2), sr(sT2)))
    e("s_waitcnt lgkmcnt(0)")
    pf_loads(e)
    srd(e, rK, sK, sT2, 1 << 16)
    e("s_load_dword %s, %s, %s" % (sr(sM2), sr(sWS, 2), sr(sT3)))
    kd(c.get('k0', 8))
    attn_srds(e)
    e("s_lshl_b32 %s, %s, 10" % (sr(sT0), sr(sHKV)))
    e("s_lshl_b32 %s, %s, 8" % (sr(sT1), sr(sSP)))
    e("s_add_u32 %s, %s, %s" % (sr(sT0), sr(sT0), sr(sT1)))
    e("s_add_u32 %s, %s, %s" % (sr(rWQ), sr(sWQ), sr(sT0)))
    e("s_addc_u32 %s, %s, 0" % (sr(rWQ+1), sr(sWQ+1)))
    e("s_sub_u32 %s, %d, %s" % (sr(rWQ+2), 448*8192, sr(sT0)))
    wo_srd(e)
    tsn(e, c, 'srd')
    if c.get('e1tag'):
        c.setdefault('e1early', 30); c.setdefault('trper', 2)
    c['wo_sched'] = mk_wo_sched(c)
    q_issue(e, c, kd)
    tsn(e, c, 'qiss')
    e("s_waitcnt lgkmcnt(0)")
    e("s_add_u32 %s, %s, 0x%x" % (sr(sTA), sr(sM2), C1))
    e("s_add_u32 %s, %s, 0x%x" % (sr(sTB), sr(sTA), C2))
    q_compute(e, c, kd)
    kd(R)
    tsn(e, c, 'qdone')
    kphase2(e, c)
    tsn(e, c, 'kend')
    softmax(e, c)
    c['pump'](16)
    tsn(e, c, 'smend')
    c['vhook'] = mk_vhook(c)
    vphase(e, c)
    tsn(e, c, 'vend')
    tail(e, c)
    tsn(e, c, 'end')
    e.vm0()
    if c.get('tsn') and c.get('dbg'):
        n = len(c['tsn'])
        e("s_waitcnt lgkmcnt(0)")
        e("s_mov_b64 exec, 1")
        e("v_mov_b32 v1, 0")
        for i in range(n):
            e("v_mov_b32 v2, %s" % sr(sTS+2*i))
            e("global_atomic_add v1, v2, s[16:17] offset:%d" % (4*i))
        e("s_not_b32 s20, %s" % sr(sTS))
        e("v_mov_b32 v2, s20")
        e("global_atomic_umax v1, v2, s[16:17] offset:56")
        e("v_mov_b32 v2, %s" % sr(sTS+2*(n-1)))
        e("global_atomic_umax v1, v2, s[16:17] offset:60")
        e.vm0()
    elif c.get('tsn'):
        c['ts'] = 1
        ts_store(e, c, len(c['tsn']))
    e.label("L_exitA")
    e("s_endpgm")
    txt = HDR + "; @launch grid=(256,1,1) block=(256,1,1) lds=%d\n" % LDS_A
    txt += HEAD + kernel_text(name, e.text())
    txt += '.section .rodata,"a"\n.p2align 6\n' + kd_text(name, 512, 256)
    return txt

if __name__ == "__main__":
    import json
    cfg = json.loads(sys.argv[2]) if len(sys.argv) > 2 else {}
    open(sys.argv[1], "w").write(build_v2(cfg))
```
